```python
import torch

def _softmax(x, axis=-1):
    return torch.softmax(x, dim=axis)
def _gelu(x):
    return torch.nn.functional.gelu(x, approximate="tanh")
def _silu(x):
    return torch.nn.functional.silu(x)
def _sigmoid(x):
    return torch.sigmoid(x)
def _layernorm(x, axis=-1, eps=1e-5):
    m = x.mean(dim=axis, keepdim=True)
    v = x.var(dim=axis, keepdim=True, unbiased=False)
    return (x - m) / torch.sqrt(v + eps)
def _scatter_add(tgt, idx, src, axis=0):
    return tgt.clone().index_add_(axis, idx, src)
def _segment_sum(src, seg, n):
    out = torch.zeros((n,) + src.shape[1:], dtype=src.dtype)
    return out.index_add_(0, seg, src)
def _pad(x, pw):
    flat = tuple(v for pair in reversed(pw) for v in pair)
    return torch.nn.functional.pad(x, flat)

kernel_name = 'standalone__edge_featured_mpnn_egc__graph'

def setup_inputs():

    _w = (lambda a: (lambda t: t.to(torch.bfloat16) if t.is_floating_point() else t)(torch.as_tensor(a)))
    N, deg, D, De = 12500, 64, 64, max(16, 1)
    E = N * deg
    return {
        "x": _w((lambda *s: torch.randn(*s, dtype=torch.bfloat16) * 0.2)(N, D)),
        "e_attr": _w((lambda *s: torch.randn(*s, dtype=torch.bfloat16) * 0.2)(E, De)),
        "src": _w((lambda lo, hi, *s: torch.randint(lo, hi, s))(0, N, E).to(torch.int64)),
        "dst": _w((lambda lo, hi, *s: torch.randint(lo, hi, s))(0, N, E).to(torch.int64)),
        "u_w": _w((lambda *s: torch.randn(*s, dtype=torch.bfloat16) * 0.05)(D, D)),
        "v_w": _w((lambda *s: torch.randn(*s, dtype=torch.bfloat16) * 0.05)(D, D)),
        "g_w": _w((lambda *s: torch.randn(*s, dtype=torch.bfloat16) * 0.2)(2 * D + De, D)),
    }

def reference(x, e_attr, src, dst, u_w, v_w, g_w):
    N, D = x.shape
    g_in = torch.concatenate([x[dst], x[src], e_attr], axis=-1)
    eta = _sigmoid(g_in @ g_w)
    hv = x @ v_w
    msg = eta * hv[src]
    agg = _segment_sum(msg, dst, N)
    return _silu(x @ u_w + agg)
```

```python
import sys, struct

def f2u(x): return struct.unpack("<I", struct.pack("<f", x))[0]
LOG2E = 1.4426950408889634

class Cfg:
    R = 4
    FAST = False
    E_NT = False

NE, NN = 800000, 12500
CH, NP, NB = 3200, 250, 256
WS_ENT = 0
WS_OFF = 0x340000
WS_WF = 0x380000
WS_SIZE = 0x390000

class Asm:
    def __init__(self): self.l = []
    def __call__(self, s):
        for line in s.strip("\n").split("\n"):
            line = line.strip()
            if not line: continue
            if line.endswith(":"): self.l.append(line)
            else: self.l.append("    " + line)
    def text(self): return "\n".join(self.l) + "\n"

def srd(a, d, lo, hi, nrec):
    a(f"""s_mov_b32 s{d}, s{lo}
    s_and_b32 s{d+1}, s{hi}, 0xffff
    s_mov_b32 s{d+2}, {nrec}
    s_mov_b32 s{d+3}, 0x00020000""")

def scan(a, v):
    for sh in (1, 2, 4, 8):
        a("s_nop 1")
        a(f"v_add_u32_dpp v{v}, v{v}, v{v} row_shr:{sh} row_mask:0xf bank_mask:0xf bound_ctrl:0")
    a("s_nop 1")
    a(f"v_add_u32_dpp v{v}, v{v}, v{v} row_bcast:15 row_mask:0xa bank_mask:0xf")
    a("s_nop 1")
    a(f"v_add_u32_dpp v{v}, v{v}, v{v} row_bcast:31 row_mask:0xc bank_mask:0xf")

def kd(name, nv, ns=102):
    return f""".p2align 6
.amdhsa_kernel {name}
  .amdhsa_next_free_vgpr {nv}
  .amdhsa_next_free_sgpr {ns}
  .amdhsa_accum_offset {(nv+3)//4*4}
  .amdhsa_group_segment_fixed_size 0
  .amdhsa_kernarg_size 80
  .amdhsa_user_sgpr_count 2
  .amdhsa_user_sgpr_kernarg_segment_ptr 1
  .amdhsa_system_sgpr_workgroup_id_x 1
.end_amdhsa_kernel
"""

K1_BLOCK = 832
K1_LDS = 2048 + CH * 4
def gen_k1():
    a = Asm()
    a(f"""
    .globl bin_kernel
    .p2align 8
    .type bin_kernel,@function
bin_kernel:
    s_cmp_ge_u32 s2, {NP}
    s_cbranch_scc1 L_k1_w
    s_load_dwordx4 s[4:7], s[0:1], 16
    s_load_dwordx2 s[8:9], s[0:1], 72
    v_and_b32 v1, 255, v0
    v_lshlrev_b32 v1, 2, v1
    v_mov_b32 v2, 0
    ds_write_b32 v1, v2
    v_lshlrev_b32 v3, 4, v0
    s_mul_i32 s3, s2, {CH*4}
    v_cmp_gt_u32 vcc, {CH//4}, v0
    v_readfirstlane_b32 s28, v0
    s_mov_b32 s29, {1<<14}
    s_mov_b32 s30, {2<<14}
    s_mov_b32 s31, {3<<14}
    s_waitcnt lgkmcnt(0)
    """)
    srd(a, 12, 4, 5, NE * 4)
    srd(a, 16, 6, 7, NE * 4)
    srd(a, 20, 8, 9, WS_SIZE)
    a(f"""
    s_and_saveexec_b64 s[24:25], vcc
    buffer_load_dwordx4 v[4:7], v3, s[16:19], s3 offen
    buffer_load_dwordx4 v[8:11], v3, s[12:15], s3 offen
    s_barrier
    v_lshlrev_b32 v12, 16, v0
    v_mov_b32 v13, 1
    s_waitcnt vmcnt(1)
    """)
    for j in range(4):
        a(f"""v_and_b32 v{14+j}, 255, v{4+j}
        v_lshlrev_b32 v{14+j}, 2, v{14+j}
        ds_add_rtn_u32 v{18+j}, v{14+j}, v13""")
    for j in range(4):
        a(f"""v_lshrrev_b32 v{4+j}, 8, v{4+j}
        v_lshl_or_b32 v{4+j}, v{4+j}, 26, v12""")
    a("s_waitcnt vmcnt(0)")
    a("v_or_b32 v4, v4, v8")
    for j in range(1, 4):
        a(f"v_or3_b32 v{4+j}, v{4+j}, v{8+j}, s{28+j}")
    a(f"""
    s_waitcnt lgkmcnt(0)
    s_barrier
    s_mov_b64 s[26:27], exec
    s_mov_b64 exec, -1
    v_and_b32 v22, 63, v0
    v_lshlrev_b32 v23, 4, v22
    ds_read_b128 v[24:27], v23
    s_waitcnt lgkmcnt(0)
    v_add_u32 v28, v24, v25
    v_add_u32 v29, v28, v26
    v_add_u32 v30, v29, v27
    v_mov_b32 v31, v30
    """)
    scan(a, 31)
    a(f"""
    v_sub_u32 v32, v31, v30
    v_add_u32 v33, v32, v24
    v_add_u32 v34, v32, v28
    v_add_u32 v35, v32, v29
    ds_write_b128 v23, v[32:35] offset:1024
    s_cmp_ge_u32 s28, 64
    s_cbranch_scc1 L_k1_nooff
    v_lshl_or_b32 v36, v24, 16, v32
    v_lshl_or_b32 v37, v25, 16, v33
    v_lshl_or_b32 v38, v26, 16, v34
    v_lshl_or_b32 v39, v27, 16, v35
    s_lshl_b32 s32, s2, 10
    s_add_u32 s32, s32, {WS_OFF}
    buffer_store_dwordx4 v[36:39], v23, s[20:23], s32 offen
L_k1_nooff:
    s_mov_b64 exec, s[26:27]
    s_waitcnt lgkmcnt(0)
    """)
    for j in range(4):
        a(f"ds_read_b32 v{40+j}, v{14+j} offset:1024")
    for j in range(4):
        a(f"""s_waitcnt lgkmcnt({3-j})
        v_add_lshl_u32 v{40+j}, v{40+j}, v{18+j}, 2""")
    for j in range(4):
        a(f"ds_write_b32 v{40+j}, v{4+j} offset:2048")
    a(f"""
    s_waitcnt lgkmcnt(0)
    s_barrier
    ds_read_b128 v[44:47], v3 offset:2048
    s_waitcnt lgkmcnt(0)
    buffer_store_dwordx4 v[44:47], v3, s[20:23], s3 offen
    s_endpgm
L_k1_w:
    s_cmp_ge_u32 s2, {NP+3}
    s_cbranch_scc1 L_k1_end
    s_load_dwordx4 s[4:7], s[0:1], 32
    s_load_dwordx2 s[8:9], s[0:1], 48
    s_load_dwordx2 s[10:11], s[0:1], 72
    v_lshrrev_b32 v1, 6, v0
    s_nop 0
    v_readfirstlane_b32 s28, v1
    s_sub_u32 s3, s2, {NP}
    s_mul_i32 s3, s3, 13
    s_add_u32 s28, s28, s3
    s_cmp_ge_u32 s28, 34
    s_cbranch_scc1 L_k1_end
    s_waitcnt lgkmcnt(0)
    s_mov_b32 s12, s8
    s_mov_b32 s13, s9
    s_mov_b32 s14, {144*128}
    s_mov_b32 s33, 0x{f2u(-LOG2E):08x}
    s_cmp_ge_u32 s28, 5
    s_cselect_b32 s30, 1, 0
    s_mul_i32 s31, s30, 5
    s_sub_u32 s31, s28, s31
    s_add_u32 s31, s31, 4
    s_cmp_lt_u32 s28, 10
    s_cbranch_scc1 L_k1_wgo
    s_mov_b32 s33, 1.0
    s_sub_u32 s29, s28, 10
    s_and_b32 s31, s29, 3
    s_lshr_b32 s30, s29, 2
    s_and_b32 s30, s30, 1
    s_cmp_ge_u32 s28, 18
    s_cbranch_scc1 L_k1_w2
    s_mov_b32 s12, s6
    s_mov_b32 s13, s7
    s_mov_b32 s14, {64*128}
    s_branch L_k1_wgo
L_k1_w2:
    s_cmp_lt_u32 s28, 26
    s_cbranch_scc1 L_k1_wgo
    s_mov_b32 s12, s4
    s_mov_b32 s13, s5
    s_mov_b32 s14, {64*128}
L_k1_wgo:
    s_and_b32 s13, s13, 0xffff
    s_mov_b32 s15, 0x00020000
    """)
    srd(a, 20, 10, 11, WS_SIZE)
    a(f"""
    s_lshl_b32 s31, s31, 11
    s_lshl_b32 s30, s30, 6
    s_add_u32 s31, s31, s30
    v_and_b32 v1, 63, v0
    v_lshrrev_b32 v2, 5, v1
    v_lshlrev_b32 v2, 10, v2
    v_and_b32 v3, 31, v0
    v_lshl_add_u32 v2, v3, 1, v2
    """)
    for j in range(8):
        a(f"buffer_load_ushort v{4+j}, v2, s[12:15], s31 offen offset:{j*128}")
    a(f"""
    v_lshlrev_b32 v1, 4, v1
    s_lshl_b32 s32, s28, 10
    s_add_u32 s32, s32, {WS_WF}
    s_waitcnt vmcnt(0)
    """)
    for j in range(8):
        a(f"""v_lshlrev_b32 v{4+j}, 16, v{4+j}
        v_mul_f32 v{4+j}, s33, v{4+j}""")
    for j in range(4):
        a(f"v_cvt_pk_bf16_f32 v{12+j}, v{4+2*j}, v{5+2*j}")
    a(f"""
    buffer_store_dwordx4 v[12:15], v1, s[20:23], s32 offen
L_k1_end:
    s_endpgm
    """)
    return a.text()

L_CNT, L_ST8, L_TM, L_FLAG = 0, 256, 512, 1280
L_LIST = 2048
LISTN = 4096
L_AGG = L_LIST + LISTN * 8
L_XA = L_AGG + 16384
L_EA = L_XA + 16384
L_XU = L_EA + 16384
K2_LDS = L_XU + 16384
NLOC = 49

V_H16, V_C4, V_LA, V_TM = 1, 2, 3, 4
V_EAA = [5, 6]; V_AGA = [7, 8]
V_LANE = 9
V_EN = 10; V_XAD = 12; V_EAD = 13
V_ACC = [14, 16]; V_EAC = [18, 20]; V_EAN = [22, 23]
V_TMP = 24
V_WG = [28, 48]; V_WV = [68, 84]
V_Z = [100, 132]; V_H = [116, 148]
V_A = 164
V_E = 100; V_AD = 116; V_RK = 132; V_W = 164
V_JW = 196; V_JX = 212; V_JC = 228
V_OFFS = 244; V_CNT = 245; V_SEG = 246; V_WB = 247; V_REM = 248; V_ONE = 249; V_START = 250; V_J4 = 251

S_WAVE, S_R0, S_STEP, S_T, S_T0, S_CNT, S_I, S_SOFF = 28, 29, 30, 31, 32, 33, 34, 35
S_ONE = 36
S_XMASK, S_FC, S_MASK, S_FIRST, S_MORE = 38, 39, 40, 41, 42
S_T1, S_T2, S_T3 = 44, 45, 46
S_X, S_E, S_WS, S_OUT, S_OFFS = 12, 16, 20, 24, 48

PAD_W0 = 16383 << 7
PAD_W1 = 0x40000000
SOFF_BAD = 0x40000000

def mfmas(blk, slot):
    A = V_A + 20 * slot
    out = []
    z, h = V_Z[blk], V_H[blk]
    for k in range(5):
        c = "0" if k == 0 else f"v[{z}:{z+15}]"
        w = V_WG[blk] + 4 * k
        out.append(f"v_mfma_f32_32x32x16_bf16 v[{z}:{z+15}], v[{A+4*k}:{A+4*k+3}], v[{w}:{w+3}], {c}")
    for k in range(4):
        c = "0" if k == 0 else f"v[{h}:{h+15}]"
        w = V_WV[blk] + 4 * k
        out.append(f"v_mfma_f32_32x32x16_bf16 v[{h}:{h+15}], v[{A+4*k}:{A+4*k+3}], v[{w}:{w+3}], {c}")
    return out

def tile_loads(slot):
    A = V_A + 20 * slot
    out = []
    nt = " nt" if Cfg.E_NT else ""
    out.append(f"buffer_load_dwordx4 v[{A+16}:{A+19}], v{V_EAD}, s[{S_E}:{S_E+3}], s{S_SOFF} offen{nt}")
    for k in range(4):
        out.append(f"buffer_load_dwordx4 v[{A+4*k}:{A+4*k+3}], v{V_XAD}, s[{S_X}:{S_X+3}], s{S_SOFF} offen offset:{32*k}")
    return out

def addr_calc(en):
    return [f"v_and_or_b32 v{V_XAD}, v{en}, s{S_XMASK}, v{V_H16}",
            f"v_add_u32 v{V_EAD}, v{en+1}, v{V_H16}"]

def ea_adv(blk):
    return [f"s_waitcnt lgkmcnt(0)",
            f"v_mov_b32 v{V_EAC[blk]}, v{V_EAN[blk]}",
            f"v_add_u32 v{V_EAA[blk]}, 256, v{V_EAA[blk]}",
            f"ds_read_b32 v{V_EAN[blk]}, v{V_EAA[blk]} offset:256"]

def acc_flush(blk):
    ac = V_ACC[blk]
    return [f"v_add_f32 v{V_TMP}, v{ac}, v{ac+1}",
            f"v_mov_b64 v[{ac}:{ac+1}], 0",
            f"ds_add_f32 v{V_AGA[blk]}, v{V_TMP}",
            f"v_add_u32 v{V_AGA[blk]}, 256, v{V_AGA[blk]}"]

def gen_loop(a, fast, tag):
    R = Cfg.R
    ool = Asm()
    uid = [0]
    def checked(ops, flush):
        uid[0] += 1
        n = f"{tag}_{uid[0]}"
        a(f"s_cmp_lg_u32 s{S_MASK}, 0")
        a(f"s_cbranch_scc1 L_chk_{n}")
        for o in ops: a(o)
        a(f"L_ret_{n}:")
        ool(f"L_chk_{n}:")
        for g in range(4):
            ool(f"s_bitcmp1_b32 s{S_MASK}, {g}")
            ool(f"s_cbranch_scc0 L_sk_{n}_{g}")
            for o in flush: ool(o)
            ool(f"L_sk_{n}_{g}:")
            ool(ops[2*g]); ool(ops[2*g+1])
        ool(f"s_branch L_ret_{n}")

    def phase(blk, mf, pre, extras):
        z, h, ac, ea = V_Z[blk], V_H[blk], V_ACC[blk], V_EAC[blk]
        ex = [f"v_exp_f32 v{z+i}, v{z+i}" for i in range(16)]
        rc = [f"v_rcp_f32 v{z+i}, v{z+i}" for i in range(16)]
        st3 = [f"v_pk_fma_f32 v[{ac}:{ac+1}], v[{z+i}:{z+i+1}], v[{h+i}:{h+i+1}], v[{ac}:{ac+1}]" for i in range(0, 16, 2)]
        extras = list(extras)
        def xtra(n=1):
            for _ in range(n):
                if extras: a(extras.pop(0))
        if not fast:
            st1 = [f"v_pk_add_f32 v[{z+i}:{z+i+1}], v[{z+i}:{z+i+1}], v[{ea}:{ea+1}] op_sel_hi:[1,0]" for i in range(0, 16, 2)]
            st2 = [f"v_pk_add_f32 v[{z+i}:{z+i+1}], v[{z+i}:{z+i+1}], s[{S_ONE}:{S_ONE+1}]" for i in range(0, 16, 2)]
            checked(st1, ea_adv(blk))
            for p in pre: a(p)
            for i in range(4):
                a(mf[i])
                for e in ex[4*i:4*i+4]:
                    a(e); xtra()
            for o in st2: a(o)
        else:
            st2 = [f"v_pk_fma_f32 v[{z+i}:{z+i+1}], v[{z+i}:{z+i+1}], v[{ea}:{ea+1}], s[{S_ONE}:{S_ONE+1}] op_sel_hi:[1,0,1]" for i in range(0, 16, 2)]
            for p in pre: a(p)
            for i in range(4):
                a(mf[i])
                for e in ex[4*i:4*i+4]:
                    a(e); xtra()
            checked(st2, ea_adv(blk))
        for i in range(5):
            a(mf[4+i])
            for r in rc[3*i:3*i+3]:
                a(r); xtra()
        a(rc[15])
        while extras: xtra()
        a("s_nop 0")
        checked(st3, acc_flush(blk))

    for s in range(R):
        a(f"ds_read_b64 v[{V_Z[1]+2*s}:{V_Z[1]+2*s+1}], v{V_LA} offset:{256*s}")
    a(f"v_add_u32 v{V_LA}, {256*R}, v{V_LA}")
    for s in range(R):
        a(f"s_cmp_lt_u32 {s}, s{S_CNT}")
        a(f"s_cselect_b32 s{S_SOFF}, 0, {SOFF_BAD}")
        a(f"s_waitcnt lgkmcnt({R-1-s})")
        for o in addr_calc(V_Z[1] + 2 * s): a(o)
        for o in tile_loads(s): a(o)
    a(f"s_mov_b32 s{S_I}, 0")
    a(f"s_waitcnt vmcnt({5*(R-1)})")
    for o in mfmas(0, 0): a(o)
    a("s_nop 7"); a("s_nop 7")
    a(f"L_loop_{tag}:")
    for s in range(R):
        a(f"v_readlane_b32 s{S_MASK}, v{V_TM}, s{S_I}")
        a(f"ds_read_b64 v[{V_EN}:{V_EN+1}], v{V_LA} offset:{256*s}")
        a(f"s_add_u32 s{S_T1}, s{S_I}, {R}")
        a(f"s_cmp_lt_u32 s{S_T1}, s{S_CNT}")
        a(f"s_cselect_b32 s{S_SOFF}, 0, {SOFF_BAD}")
        phase(0, mfmas(1, s), [], [])
        a("s_waitcnt lgkmcnt(0)")
        for o in addr_calc(V_EN): a(o)
        for o in tile_loads(s): a(o)
        phase(1, mfmas(0, (s + 1) % R), [f"s_waitcnt vmcnt({5*(R-1)})"], [])
        a(f"s_add_u32 s{S_I}, s{S_I}, 1")
        a(f"s_cmp_ge_u32 s{S_I}, s{S_CNT}")
        if s < R - 1:
            a(f"s_cbranch_scc1 L_done_{tag}")
        else:
            a(f"v_add_u32 v{V_LA}, {256*R}, v{V_LA}")
            a(f"s_cbranch_scc0 L_loop_{tag}")
    a(f"L_done_{tag}:")
    for blk in (0, 1):
        for o in acc_flush(blk): a(o)
    return ool

def gen_k2():
    a = Asm()
    a(f"""
    .globl main_kernel
    .p2align 8
    .type main_kernel,@function
main_kernel:
    s_cmp_ge_u32 s2, {NB}
    s_cbranch_scc1 L_k2_end
    s_load_dwordx4 s[4:7], s[0:1], 0
    s_load_dwordx2 s[8:9], s[0:1], 56
    s_load_dwordx2 s[10:11], s[0:1], 72
    v_lshrrev_b32 v{V_TMP}, 6, v0
    v_and_b32 v{V_LANE}, 63, v0
    v_readfirstlane_b32 s{S_WAVE}, v{V_TMP}
    v_lshrrev_b32 v{V_H16}, 5, v{V_LANE}
    v_lshlrev_b32 v{V_H16}, 4, v{V_H16}
    v_and_b32 v{V_C4}, 31, v0
    v_lshlrev_b32 v{V_C4}, 2, v{V_C4}
    v_mov_b32 v{V_ONE}, 1
    s_mov_b32 s{S_ONE}, 1.0
    s_mov_b32 s{S_ONE+1}, 1.0
    s_mov_b32 s{S_XMASK}, {PAD_W0}
    s_mov_b32 s{S_FC}, 0xfc
    s_mov_b32 s{S_R0}, 0
    s_mov_b32 s{S_STEP}, 32
    s_mov_b32 s{S_FIRST}, 1
    v_lshrrev_b32 v{V_WB}, 1, v0
    v_lshlrev_b32 v{V_TMP}, 10, v{V_WB}
    s_lshl_b32 s{S_T1}, s2, 2
    s_waitcnt lgkmcnt(0)
    s_add_u32 s{S_OFFS}, s10, {WS_OFF}
    s_addc_u32 s{S_OFFS+1}, s11, 0
    s_and_b32 s{S_OFFS+1}, s{S_OFFS+1}, 0xffff
    s_mov_b32 s{S_OFFS+2}, {NP*1024}
    s_mov_b32 s{S_OFFS+3}, 0x00020000
    buffer_load_dword v{V_OFFS}, v{V_TMP}, s[{S_OFFS}:{S_OFFS+3}], s{S_T1} offen
    """)
    srd(a, S_X, 4, 5, NN * 128)
    srd(a, S_E, 6, 7, NE * 32)
    srd(a, S_WS, 10, 11, WS_SIZE)
    srd(a, S_OUT, 8, 9, NN * 128)
    a(f"""
    s_lshr_b32 s{S_T1}, s{S_WAVE}, 2
    s_and_b32 s{S_T2}, s{S_WAVE}, 3
    v_and_b32 v{V_TMP}, 31, v0
    s_lshl_b32 s{S_T3}, s{S_T1}, 5
    v_add_u32 v{V_TMP}, s{S_T3}, v{V_TMP}
    v_lshlrev_b32 v{V_TMP}, 8, v{V_TMP}
    v_add_u32 v{V_TMP}, s2, v{V_TMP}
    v_lshl_add_u32 v{V_TMP}, v{V_TMP}, 7, v{V_H16}
    v_lshlrev_b32 v{V_TMP+1}, 4, v{V_LANE}
    s_lshl_b32 s{S_T3}, s{S_T2}, 12
    s_add_u32 s{S_T3}, s{S_T3}, {WS_WF + 18*1024}
    """)
    for k in range(4):
        a(f"buffer_load_dwordx4 v[{V_JX+4*k}:{V_JX+4*k+3}], v{V_TMP}, s[{S_X}:{S_X+3}], 0 offen offset:{32*k}")
    for k in range(4):
        a(f"buffer_load_dwordx4 v[{V_JW+4*k}:{V_JW+4*k+3}], v{V_TMP+1}, s[{S_WS}:{S_WS+3}], s{S_T3} offen offset:{1024*k}")
    for f in range(18):
        if f % 4 == 0:
            a(f"s_mov_b32 s{S_T3}, {WS_WF + f*1024}")
        a(f"buffer_load_dwordx4 v[{28+4*f}:{31+4*f}], v{V_TMP+1}, s[{S_WS}:{S_WS+3}], s{S_T3} offen offset:{1024*(f%4)}")
    a(f"""
    v_mov_b32 v{V_E}, 0
    v_mov_b32 v{V_E+1}, 0
    v_mov_b32 v{V_E+2}, 0
    v_mov_b32 v{V_E+3}, 0
    v_lshlrev_b32 v{V_TMP+2}, 4, v0
    ds_write_b128 v{V_TMP+2}, v[{V_E}:{V_E+3}] offset:{L_AGG}
    ds_write_b128 v{V_TMP+2}, v[{V_E}:{V_E+3}] offset:{L_AGG+8192}
L_k2_init:
    v_mov_b32 v{V_E}, 0
    v_lshlrev_b32 v{V_TMP+2}, 2, v0
    ds_write_b32 v{V_TMP+2}, v{V_E}
    v_mov_b32 v{V_E}, {PAD_W0}
    v_mov_b32 v{V_E+1}, {PAD_W1}
    v_mov_b32 v{V_E+2}, {PAD_W0}
    v_mov_b32 v{V_E+3}, {PAD_W1}
    v_lshlrev_b32 v{V_TMP+2}, 4, v0
    """)
    for k in range(4):
        a(f"ds_write_b128 v{V_TMP+2}, v[{V_E}:{V_E+3}] offset:{L_LIST + 8192*k}")
    a(f"""
    s_cmp_eq_u32 s{S_FIRST}, 0
    s_cbranch_scc1 L_k2_round
    s_waitcnt vmcnt(26)
    v_and_b32 v{V_SEG}, 0xffff, v{V_OFFS}
    v_lshrrev_b32 v{V_CNT}, 16, v{V_OFFS}
    v_and_b32 v{V_J4}, 1, v0
    v_lshlrev_b32 v{V_J4}, 2, v{V_J4}
    v_mul_u32_u24 v{V_TMP}, {CH}, v{V_WB}
    v_add3_u32 v{V_SEG}, v{V_SEG}, v{V_TMP}, v{V_J4}
    v_lshlrev_b32 v{V_SEG}, 2, v{V_SEG}
    v_lshlrev_b32 v{V_WB}, 5, v{V_TMP}
L_k2_round:
    s_add_u32 s{S_T1}, s{S_R0}, s{S_STEP}
    v_min_u32 v{V_REM}, s{S_T1}, v{V_CNT}
    v_subrev_u32 v{V_REM}, s{S_R0}, v{V_REM}
    v_sub_u32 v{V_REM}, v{V_REM}, v{V_J4}
    s_lshl_b32 s{S_T2}, s{S_R0}, 2
    """)
    for k in range(4):
        a(f"""v_cmpx_lt_i32 vcc, {8*k}, v{V_REM}
        s_cbranch_execz L_k2_ld_done
        buffer_load_dwordx4 v[{V_E+4*k}:{V_E+4*k+3}], v{V_SEG}, s[{S_WS}:{S_WS+3}], s{S_T2} offen offset:{32*k}""")
    a(f"""
L_k2_ld_done:
    s_mov_b64 exec, -1
    s_waitcnt lgkmcnt(0)
    s_barrier
    v_cmpx_lt_u32 vcc, s{S_T1}, v{V_CNT}
    v_mov_b32 v{V_TMP}, {L_FLAG}
    ds_write_b32 v{V_TMP}, v{V_ONE}
    s_mov_b64 exec, -1
    s_cmp_eq_u32 s{S_FIRST}, 0
    s_cbranch_scc1 L_k2_nojob
    s_mov_b32 s{S_FIRST}, 0
    s_waitcnt vmcnt(18)
    """)
    for k in range(4):
        c = "0" if k == 0 else f"v[{V_JC}:{V_JC+15}]"
        a(f"v_mfma_f32_32x32x16_bf16 v[{V_JC}:{V_JC+15}], v[{V_JX+4*k}:{V_JX+4*k+3}], v[{V_JW+4*k}:{V_JW+4*k+3}], {c}")
    a(f"""
    s_lshr_b32 s{S_T1}, s{S_WAVE}, 2
    s_lshl_b32 s{S_T1}, s{S_T1}, 13
    s_and_b32 s{S_T2}, s{S_WAVE}, 1
    s_lshl_b32 s{S_T2}, s{S_T2}, 7
    s_add_u32 s{S_T1}, s{S_T1}, s{S_T2}
    v_lshlrev_b32 v{V_TMP}, 6, v{V_H16}
    v_add3_u32 v{V_TMP}, v{V_TMP}, v{V_C4}, s{S_T1}
    s_bitcmp1_b32 s{S_WAVE}, 1
    s_cbranch_scc1 L_k2_jobu
    v_add_u32 v{V_TMP}, {L_XA}, v{V_TMP}
    s_mov_b32 s{S_T2}, 0x{f2u(-LOG2E):08x}
    s_nop 7
    s_nop 3
    """)
    for i in range(16):
        a(f"v_mul_f32 v{V_JC+i}, s{S_T2}, v{V_JC+i}")
        a(f"ds_write_b32 v{V_TMP}, v{V_JC+i} offset:{((i//4)*8 + i%4)*256}")
    if Cfg.FAST:
        for i in range(16):
            a(f"v_exp_f32 v{V_JX+i}, v{V_JC+i}")
        a(f"v_max3_f32 v{V_TMP+1}, |v{V_JC}|, |v{V_JC+1}|, |v{V_JC+2}|")
        for i in range(3, 15, 2):
            a(f"v_max3_f32 v{V_TMP+1}, |v{V_JC+i}|, |v{V_JC+i+1}|, v{V_TMP+1}")
        a(f"v_max_f32 v{V_TMP+1}, |v{V_JC+15}|, v{V_TMP+1}")
        for i in range(16):
            a(f"ds_write_b32 v{V_TMP}, v{V_JX+i} offset:{16384 + ((i//4)*8 + i%4)*256}")
        a(f"""
        v_mov_b32 v{V_TMP+2}, 0x42800000
        v_cmpx_nle_f32 vcc, v{V_TMP+1}, v{V_TMP+2}
        v_mov_b32 v{V_TMP}, {L_AGG + 16384 - 4}
        ds_write_b32 v{V_TMP}, v{V_ONE}
        s_mov_b64 exec, -1
        """)
    a(f"""
    s_branch L_k2_nojob
L_k2_jobu:
    v_add_u32 v{V_TMP}, {L_XU}, v{V_TMP}
    s_nop 7
    s_nop 3
    """)
    for i in range(16):
        a(f"ds_write_b32 v{V_TMP}, v{V_JC+i} offset:{((i//4)*8 + i%4)*256}")
    a(f"""
L_k2_nojob:
    s_waitcnt vmcnt(0)
    """)
    for k in range(4):
        for m in range(4):
            sl = 4 * k + m
            a(f"v_cmpx_lt_i32 vcc, {8*k+m}, v{V_REM}")
            if m == 0: a("s_cbranch_execz L_k2_cnt_done")
            a(f"v_and_b32_sdwa v{V_AD+sl}, v{V_E+sl}, s{S_FC} dst_sel:DWORD dst_unused:UNUSED_PAD src0_sel:BYTE_3 src1_sel:DWORD")
            a(f"ds_add_rtn_u32 v{V_RK+sl}, v{V_AD+sl}, v{V_ONE} offset:{L_CNT}")
            a(f"v_lshlrev_b32 v{V_W+2*sl}, 7, v{V_E+sl}")
            a(f"v_bfe_u32 v{V_W+2*sl+1}, v{V_E+sl}, 14, 12")
            a(f"v_lshl_add_u32 v{V_W+2*sl+1}, v{V_W+2*sl+1}, 5, v{V_WB}")
    a(f"""
L_k2_cnt_done:
    s_mov_b64 exec, -1
    v_lshlrev_b32 v{V_TMP+3}, 2, v{V_LANE}
    v_mov_b32 v{V_TMP+2}, {L_FLAG}
    s_waitcnt lgkmcnt(0)
    s_barrier
    ds_read_b32 v{V_TMP}, v{V_TMP+3} offset:{L_CNT}
    ds_read_b32 v{V_TMP+2}, v{V_TMP+2}
    v_cmp_gt_u32 vcc, {NLOC}, v{V_LANE}
    s_waitcnt lgkmcnt(0)
    v_readfirstlane_b32 s{S_MORE}, v{V_TMP+2}
    v_add_u32 v{V_TMP}, 7, v{V_TMP}
    v_and_b32 v{V_TMP}, -8, v{V_TMP}
    v_max_u32 v{V_TMP}, 8, v{V_TMP}
    v_cndmask_b32 v{V_TMP}, 0, v{V_TMP}, vcc
    v_mov_b32 v{V_TMP+1}, v{V_TMP}
    """)
    scan(a, V_TMP + 1)
    a(f"""
    s_nop 1
    v_readlane_b32 s{S_T}, v{V_TMP+1}, 63
    v_sub_u32 v{V_START}, v{V_TMP+1}, v{V_TMP}
    s_cmp_le_u32 s{S_T}, {LISTN}
    s_cbranch_scc1 L_k2_fits
    s_mov_b32 s{S_STEP}, 8
    s_barrier
    s_branch L_k2_init
L_k2_fits:
    s_add_u32 s{S_T}, s{S_T}, 31
    s_lshr_b32 s{S_T}, s{S_T}, 5
    v_lshl_add_u32 v{V_TMP}, v{V_START}, 3, 0
    v_add_u32 v{V_TMP}, {L_LIST}, v{V_TMP}
    ds_write_b32 v{V_TMP+3}, v{V_TMP} offset:{L_ST8}
    v_lshrrev_b32 v{V_TMP}, 5, v{V_START}
    v_lshlrev_b32 v{V_TMP}, 2, v{V_TMP}
    v_bfe_u32 v{V_TMP+1}, v{V_START}, 3, 2
    v_lshlrev_b32 v{V_TMP+1}, v{V_TMP+1}, v{V_ONE}
    s_mov_b64 exec, vcc
    ds_or_b32 v{V_TMP}, v{V_TMP+1} offset:{L_TM}
    s_mov_b64 exec, -1
    v_cndmask_b32 v{V_START}, -1, v{V_START}, vcc
    s_waitcnt lgkmcnt(0)
    """)
    for k in range(4):
        a(f"v_cmpx_lt_i32 vcc, {8*k}, v{V_REM}")
        a("s_cbranch_execz L_k2_rd_done")
        for m in range(4):
            sl = 4 * k + m
            a(f"ds_read_b32 v{V_AD+sl}, v{V_AD+sl} offset:{L_ST8}")
    a(f"""
L_k2_rd_done:
    s_mov_b64 exec, -1
    s_lshr_b32 s{S_T1}, s{S_T}, 3
    s_and_b32 s{S_T2}, s{S_T}, 7
    s_cmp_lt_u32 s{S_WAVE}, s{S_T2}
    s_cselect_b32 s{S_T3}, 1, 0
    s_add_u32 s{S_CNT}, s{S_T1}, s{S_T3}
    s_mul_i32 s{S_T0}, s{S_WAVE}, s{S_T1}
    s_min_u32 s{S_T3}, s{S_WAVE}, s{S_T2}
    s_add_u32 s{S_T0}, s{S_T0}, s{S_T3}
    s_waitcnt lgkmcnt(0)
    """)
    for k in range(4):
        for m in range(4):
            sl = 4 * k + m
            a(f"v_cmpx_lt_i32 vcc, {8*k+m}, v{V_REM}")
            if m == 0: a("s_cbranch_execz L_k2_pl_done")
            a(f"v_lshl_add_u32 v{V_AD+sl}, v{V_RK+sl}, 3, v{V_AD+sl}")
            a(f"ds_write_b64 v{V_AD+sl}, v[{V_W+2*sl}:{V_W+2*sl+1}]")
    a(f"""
L_k2_pl_done:
    s_mov_b64 exec, -1
    s_lshl_b32 s{S_T1}, s{S_T0}, 5
    v_cmp_ge_u32 vcc, s{S_T1}, v{V_START}
    s_lshl_b32 s{S_T2}, s{S_T0}, 2
    v_add_u32 v{V_TMP}, s{S_T2}, v{V_TMP+3}
    ds_read_b32 v{V_TM}, v{V_TMP} offset:{L_TM}
    s_bcnt1_i32_b64 s{S_T3}, vcc
    s_sub_u32 s{S_T3}, s{S_T3}, 1
    s_lshl_b32 s{S_T3}, s{S_T3}, 8
    v_add_u32 v{V_TMP}, s{S_T3}, v{V_C4}
    v_add_u32 v{V_AGA[0]}, {L_AGG}, v{V_TMP}
    v_add_u32 v{V_AGA[1]}, {L_AGG+128}, v{V_TMP}
    v_add_u32 v{V_EAA[0]}, {L_XA}, v{V_TMP}
    v_add_u32 v{V_EAA[1]}, {L_XA+128}, v{V_TMP}
    s_lshl_b32 s{S_T1}, s{S_T0}, 8
    s_add_u32 s{S_T1}, s{S_T1}, {L_LIST}
    v_lshlrev_b32 v{V_LA}, 1, v{V_C4}
    v_add_u32 v{V_LA}, s{S_T1}, v{V_LA}
    v_mov_b64 v[{V_ACC[0]}:{V_ACC[0]+1}], 0
    v_mov_b64 v[{V_ACC[1]}:{V_ACC[1]+1}], 0
    v_mov_b32 v{V_TMP+2}, {L_AGG + 16384 - 4}
    s_waitcnt lgkmcnt(0)
    v_readfirstlane_b32 s{S_T1}, v{V_TM}
    s_barrier
    s_and_b32 s{S_T1}, s{S_T1}, -2
    v_writelane_b32 v{V_TM}, s{S_T1}, 0
    s_cmp_eq_u32 s{S_CNT}, 0
    s_cbranch_scc1 L_k2_after
    """)
    ools = []
    if Cfg.FAST:
        a(f"""
        ds_read_b32 v{V_TMP+2}, v{V_TMP+2}
        s_waitcnt lgkmcnt(0)
        v_readfirstlane_b32 s{S_T1}, v{V_TMP+2}
        s_cmp_lg_u32 s{S_T1}, 0
        s_cbranch_scc1 L_k2_safe
        v_add_u32 v{V_EAA[0]}, 16384, v{V_EAA[0]}
        v_add_u32 v{V_EAA[1]}, 16384, v{V_EAA[1]}
        """)
        for blk in (0, 1):
            a(f"ds_read_b32 v{V_EAC[blk]}, v{V_EAA[blk]}")
            a(f"ds_read_b32 v{V_EAN[blk]}, v{V_EAA[blk]} offset:256")
        a("s_waitcnt lgkmcnt(0)")
        ools.append(gen_loop(a, True, "f"))
        a("s_branch L_k2_after")
        a("L_k2_safe:")
    for blk in (0, 1):
        a(f"ds_read_b32 v{V_EAC[blk]}, v{V_EAA[blk]}")
        a(f"ds_read_b32 v{V_EAN[blk]}, v{V_EAA[blk]} offset:256")
    a("s_waitcnt lgkmcnt(0)")
    ools.append(gen_loop(a, False, "s"))
    a(f"""
L_k2_after:
    s_waitcnt vmcnt(0) lgkmcnt(0)
    s_barrier
    s_cmp_eq_u32 s{S_MORE}, 0
    s_cbranch_scc1 L_k2_epi
    s_add_u32 s{S_R0}, s{S_R0}, s{S_STEP}
    s_branch L_k2_init
L_k2_epi:
    v_cmp_gt_u32 vcc, {NLOC*8}, v0
    s_and_saveexec_b64 s[{S_T1}:{S_T1+1}], vcc
    s_cbranch_execz L_k2_end
    v_lshlrev_b32 v{V_TMP}, 5, v0
    v_add_u32 v{V_TMP+1}, {L_XU}, v{V_TMP}
    ds_read_b128 v[100:103], v{V_TMP} offset:{L_AGG}
    ds_read_b128 v[104:107], v{V_TMP} offset:{L_AGG+16}
    ds_read_b128 v[108:111], v{V_TMP+1}
    ds_read_b128 v[112:115], v{V_TMP+1} offset:16
    v_lshrrev_b32 v{V_TMP+2}, 3, v0
    v_lshlrev_b32 v{V_TMP+2}, 8, v{V_TMP+2}
    v_add_u32 v{V_TMP+2}, s2, v{V_TMP+2}
    v_lshlrev_b32 v{V_TMP+2}, 7, v{V_TMP+2}
    v_and_b32 v{V_TMP+3}, 7, v0
    v_lshl_add_u32 v{V_TMP+2}, v{V_TMP+3}, 4, v{V_TMP+2}
    s_mov_b32 s{S_T3}, 0x{f2u(-LOG2E):08x}
    s_waitcnt lgkmcnt(0)
    """)
    for i in range(8):
        a(f"v_add_f32 v{100+i}, v{100+i}, v{108+i}")
    for i in range(8):
        a(f"v_mul_f32 v{108+i}, s{S_T3}, v{100+i}")
    for i in range(8):
        a(f"v_exp_f32 v{108+i}, v{108+i}")
    for i in range(8):
        a(f"v_add_f32 v{108+i}, 1.0, v{108+i}")
    for i in range(8):
        a(f"v_rcp_f32 v{108+i}, v{108+i}")
    for i in range(8):
        a(f"v_mul_f32 v{100+i}, v{100+i}, v{108+i}")
    for i in range(4):
        a(f"v_cvt_pk_bf16_f32 v{116+i}, v{100+2*i}, v{101+2*i}")
    a(f"""
    buffer_store_dwordx4 v[116:119], v{V_TMP+2}, s[{S_OUT}:{S_OUT+3}], 0 offen
L_k2_end:
    s_endpgm
    """)
    return a.text() + "".join(o.text() for o in ools)

HDR = open("standalone__edge_featured_mpnn_egc__graph.s.ref").read().split("; Override launch")[0]

def build(path):
    s = HDR
    s += f"; @launch kernel=bin_kernel grid=({NP+3},1,1) block=({K1_BLOCK},1,1) lds={K1_LDS}\n"
    s += f"; @launch kernel=main_kernel grid=({NB},1,1) block=(512,1,1) lds={K2_LDS}\n"
    s += '.amdgcn_target "amdgcn-amd-amdhsa--gfx950"\n.text\n'
    s += gen_k1() + gen_k2()
    s += '.section .rodata,"a"\n' + kd("bin_kernel", 48, 40) + kd("main_kernel", 256, 56)
    open(path, "w").write(s)

if __name__ == "__main__":
    out = "standalone__edge_featured_mpnn_egc__graph.s"
    for arg in sys.argv[1:]:
        if "=" in arg:
            k, v = arg.split("=")
            if k == "out": out = v
            else: setattr(Cfg, k, eval(v))
    build(out)
    print("wrote", out)
```

```python
import sys, struct

def f2u(x): return struct.unpack("<I", struct.pack("<f", x))[0]
LOG2E = 1.4426950408889634

class Cfg:
    E_NT = False
    STAMP = False
    NOE = False
    NOX = False
    ALIGN = 1
    BENCH = 0
    NOVM = False
    NOADD = False
    NOLDS = False
    NOCOMP = False

NE, NN = 800000, 12500
CH, NP, NB = 3200, 250, 256
SEGSTR = 16384
WS_ENT = 0
WS_OFF = 0x400000
WS_WF = 0x440000
WS_STAMP = 0x480000
WS_SIZE = 0x800000

class Asm:
    def __init__(self): self.l = []
    def __call__(self, s):
        if isinstance(s, (list, tuple)):
            for x in s: self(x)
            return
        for line in s.strip("\n").split("\n"):
            line = line.strip()
            if not line: continue
            if line.endswith(":"): self.l.append(line)
            else: self.l.append("    " + line)
    def text(self): return "\n".join(self.l) + "\n"

def srd(a, d, lo, hi, nrec):
    a(f"""s_mov_b32 s{d}, s{lo}
    s_and_b32 s{d+1}, s{hi}, 0xffff
    s_mov_b32 s{d+2}, {nrec}
    s_mov_b32 s{d+3}, 0x00020000""")

def scan(a, v):
    for sh in (1, 2, 4, 8):
        a("s_nop 1")
        a(f"v_add_u32_dpp v{v}, v{v}, v{v} row_shr:{sh} row_mask:0xf bank_mask:0xf bound_ctrl:0")
    a("s_nop 1")
    a(f"v_add_u32_dpp v{v}, v{v}, v{v} row_bcast:15 row_mask:0xa bank_mask:0xf")
    a("s_nop 1")
    a(f"v_add_u32_dpp v{v}, v{v}, v{v} row_bcast:31 row_mask:0xc bank_mask:0xf")

def kd(name, nv, ns=102):
    return f""".p2align 6
.amdhsa_kernel {name}
  .amdhsa_next_free_vgpr {nv}
  .amdhsa_next_free_sgpr {ns}
  .amdhsa_accum_offset {(nv+3)//4*4}
  .amdhsa_group_segment_fixed_size 0
  .amdhsa_kernarg_size 80
  .amdhsa_user_sgpr_count 2
  .amdhsa_user_sgpr_kernarg_segment_ptr 1
  .amdhsa_system_sgpr_workgroup_id_x 1
.end_amdhsa_kernel
"""

K1_BLOCK = 832
K1_LDS = 2048 + SEGSTR
def gen_k1():
    a = Asm()
    a(f"""
    .globl bin_kernel
    .p2align 8
    .type bin_kernel,@function
bin_kernel:
    s_cmp_ge_u32 s2, {NP}
    s_cbranch_scc1 L_k1_w
    s_load_dwordx4 s[4:7], s[0:1], 16
    s_load_dwordx2 s[8:9], s[0:1], 72
    v_lshlrev_b32 v3, 4, v0
    s_mul_i32 s3, s2, {CH*4}
    v_cmp_gt_u32 vcc, {CH//4}, v0
    v_and_b32 v1, 255, v0
    v_lshlrev_b32 v1, 2, v1
    v_mov_b32 v2, 0
    ds_write_b32 v1, v2
    v_mov_b32 v44, -1
    v_mov_b32 v45, -1
    v_mov_b32 v46, -1
    v_mov_b32 v47, -1
    ds_write_b128 v3, v[44:47] offset:2048
    v_lshlrev_b32 v2, 2, v1
    ds_write_b128 v2, v[44:47] offset:{2048 + 768*16}
    v_readfirstlane_b32 s28, v0
    s_mov_b32 s34, 0x7c
    s_mov_b32 s14, {NE*4}
    s_mov_b32 s15, 0x00020000
    s_mov_b32 s18, {NE*4}
    s_mov_b32 s19, 0x00020000
    s_waitcnt lgkmcnt(0)
    s_mov_b32 s16, s6
    s_and_b32 s17, s7, 0xffff
    s_mov_b32 s12, s4
    s_and_b32 s13, s5, 0xffff
    s_and_saveexec_b64 s[24:25], vcc
    buffer_load_dwordx4 v[4:7], v3, s[16:19], s3 offen
    buffer_load_dwordx4 v[8:11], v3, s[12:15], s3 offen
    """)
    srd(a, 20, 8, 9, WS_SIZE)
    a(f"""
    s_barrier
    v_lshlrev_b32 v12, 2, v0
    v_mov_b32 v13, 1
    s_waitcnt vmcnt(1)
    """)
    for j in range(4):
        a(f"""v_and_b32 v{14+j}, 7, v{4+j}
        v_lshlrev_b32 v{14+j}, 7, v{14+j}
        v_lshrrev_b32 v{18+j}, 1, v{4+j}
        v_and_or_b32 v{14+j}, v{18+j}, s34, v{14+j}
        ds_add_rtn_u32 v{18+j}, v{14+j}, v13""")
    for j in range(4):
        a(f"""v_lshrrev_b32 v{4+j}, 8, v{4+j}
        v_lshl_or_b32 v{4+j}, v{4+j}, 26, v12""")
    a("s_waitcnt vmcnt(0)")
    for j in range(4):
        a(f"v_lshl_or_b32 v{8+j}, v{8+j}, 12, {j}")
        a(f"v_or_b32 v{4+j}, v{4+j}, v{8+j}")
    a(f"""
    s_waitcnt lgkmcnt(0)
    s_barrier
    s_mov_b64 s[26:27], exec
    s_mov_b64 exec, -1
    v_and_b32 v22, 63, v0
    v_lshlrev_b32 v23, 4, v22
    ds_read_b128 v[24:27], v23
    s_waitcnt lgkmcnt(0)
    """)
    for j in range(4):
        a(f"""v_add_u32 v{24+j}, 3, v{24+j}
        v_lshrrev_b32 v{24+j}, 2, v{24+j}""")
    a(f"""
    v_add_u32 v28, v24, v25
    v_add_u32 v29, v28, v26
    v_add_u32 v30, v29, v27
    v_mov_b32 v31, v30
    """)
    scan(a, 31)
    a(f"""
    v_sub_u32 v32, v31, v30
    v_add_u32 v33, v32, v24
    v_add_u32 v34, v32, v28
    v_add_u32 v35, v32, v29
    v_readlane_b32 s33, v31, 63
    ds_write_b128 v23, v[32:35] offset:1024
    s_cmp_ge_u32 s28, 64
    s_cbranch_scc1 L_k1_nooff
    v_lshl_or_b32 v36, v24, 16, v32
    v_lshl_or_b32 v37, v25, 16, v33
    v_lshl_or_b32 v38, v26, 16, v34
    v_lshl_or_b32 v39, v27, 16, v35
    s_lshl_b32 s32, s2, 10
    s_add_u32 s32, s32, {WS_OFF}
    buffer_store_dwordx4 v[36:39], v23, s[20:23], s32 offen
L_k1_nooff:
    s_mov_b64 exec, s[26:27]
    s_waitcnt lgkmcnt(0)
    """)
    for j in range(4):
        a(f"ds_read_b32 v{40+j}, v{14+j} offset:1024")
    for j in range(4):
        a(f"v_lshlrev_b32 v{18+j}, 2, v{18+j}")
    for j in range(4):
        a(f"""s_waitcnt lgkmcnt({3-j})
        v_lshl_add_u32 v{40+j}, v{40+j}, 4, v{18+j}""")
    for j in range(4):
        a(f"ds_write_b32 v{40+j}, v{4+j} offset:2048")
    a(f"""
    s_mov_b64 exec, -1
    s_lshl_b32 s3, s2, 14
    v_add_u32 v2, {K1_BLOCK}, v0
    s_waitcnt lgkmcnt(0)
    s_barrier
    ds_read_b128 v[44:47], v3 offset:2048
    ds_read_b128 v[36:39], v3 offset:{2048 + K1_BLOCK*16}
    v_cmp_gt_u32 vcc, s33, v2
    s_add_u32 s32, s3, {K1_BLOCK*16}
    s_waitcnt lgkmcnt(1)
    buffer_store_dwordx4 v[44:47], v3, s[20:23], s3 offen
    s_and_saveexec_b64 s[24:25], vcc
    s_cbranch_execz L_k1_end
    s_waitcnt lgkmcnt(0)
    buffer_store_dwordx4 v[36:39], v3, s[20:23], s32 offen
    s_endpgm
L_k1_w:
    s_cmp_ge_u32 s2, {NP+3}
    s_cbranch_scc1 L_k1_end
    s_load_dwordx4 s[4:7], s[0:1], 32
    s_load_dwordx2 s[8:9], s[0:1], 48
    s_load_dwordx2 s[10:11], s[0:1], 72
    v_lshrrev_b32 v1, 6, v0
    s_nop 0
    v_readfirstlane_b32 s28, v1
    s_sub_u32 s3, s2, {NP}
    s_mul_i32 s3, s3, 13
    s_add_u32 s28, s28, s3
    s_cmp_ge_u32 s28, 34
    s_cbranch_scc1 L_k1_end
    s_waitcnt lgkmcnt(0)
    s_mov_b32 s12, s8
    s_mov_b32 s13, s9
    s_mov_b32 s14, {144*128}
    s_mov_b32 s33, 0x{f2u(-LOG2E):08x}
    s_cmp_ge_u32 s28, 5
    s_cselect_b32 s30, 1, 0
    s_mul_i32 s31, s30, 5
    s_sub_u32 s31, s28, s31
    s_add_u32 s31, s31, 4
    s_cmp_lt_u32 s28, 10
    s_cbranch_scc1 L_k1_wgo
    s_mov_b32 s33, 1.0
    s_sub_u32 s29, s28, 10
    s_and_b32 s31, s29, 3
    s_lshr_b32 s30, s29, 2
    s_and_b32 s30, s30, 1
    s_cmp_ge_u32 s28, 18
    s_cbranch_scc1 L_k1_w2
    s_mov_b32 s12, s6
    s_mov_b32 s13, s7
    s_mov_b32 s14, {64*128}
    s_branch L_k1_wgo
L_k1_w2:
    s_cmp_lt_u32 s28, 26
    s_cbranch_scc1 L_k1_wgo
    s_mov_b32 s12, s4
    s_mov_b32 s13, s5
    s_mov_b32 s14, {64*128}
L_k1_wgo:
    s_and_b32 s13, s13, 0xffff
    s_mov_b32 s15, 0x00020000
    """)
    srd(a, 20, 10, 11, WS_SIZE)
    a(f"""
    s_lshl_b32 s31, s31, 11
    s_lshl_b32 s30, s30, 6
    s_add_u32 s31, s31, s30
    v_and_b32 v1, 63, v0
    v_lshrrev_b32 v2, 5, v1
    v_lshlrev_b32 v2, 10, v2
    v_and_b32 v3, 31, v0
    v_lshl_add_u32 v2, v3, 1, v2
    """)
    for j in range(8):
        a(f"buffer_load_ushort v{4+j}, v2, s[12:15], s31 offen offset:{j*128}")
    a(f"""
    v_lshlrev_b32 v1, 4, v1
    s_lshl_b32 s32, s28, 10
    s_add_u32 s32, s32, {WS_WF}
    s_waitcnt vmcnt(0)
    """)
    for j in range(8):
        a(f"""v_lshlrev_b32 v{4+j}, 16, v{4+j}
        v_mul_f32 v{4+j}, s33, v{4+j}""")
    for j in range(4):
        a(f"v_cvt_pk_bf16_f32 v{12+j}, v{4+2*j}, v{5+2*j}")
    a(f"""
    buffer_store_dwordx4 v[12:15], v1, s[20:23], s32 offen
L_k1_end:
    s_endpgm
    """)
    return a.text()

L_CNT, L_ST4, L_TM, L_FLAG = 0, 256, 512, 1280
L_GN = 2048
LISTN = 3584
L_XL = 4352
L_EL = L_XL + LISTN * 4
PL = 50 * 256
L_XA = L_EL + LISTN * 4
L_AGG = L_XA + PL
L_RING = L_AGG + 2 * PL
XQ = 1056
XSLOT = 4 * XQ
NES = 3
RINGW = 2 * XSLOT + NES * 1024
K2_LDS = L_RING + 8 * RINGW
NLOC = 49
WSTG = 32768
assert K2_LDS <= 163840 and L_AGG + PL < 65536 and L_XL % 256 == 0 and L_EL % 256 == 0

V_H16, V_C4, V_XLA, V_ELA, V_GNA = 1, 2, 3, 4, 5
V_CO, V_ECO, V_RA, V_RE0, V_RE = 6, 7, 8, 9, 10
V_EEN, V_XAD, V_LANE = 11, 12, 13
V_C8 = 14
V_TMP = 16
V_S = 20
V_WG = [28, 48]; V_WV = [68, 84]
V_Z = [100, 132]; V_H = [116, 148]
V_A = 164
V_EA = 180
V_XEN = 184
V_GNR = 188
V_GA = [192, 196]
V_XAV = 200
V_E = 100; V_AD = 116; V_RK = 132; V_W = 164
V_JW = 208; V_JX = 224; V_JC = 148
V_OFFS = 244; V_CNT = 245; V_SEG = 246; V_WB = 247; V_REM = 248; V_ONE = 249; V_START = 250; V_J = 251; V_L16 = 252; V_L4 = 253

S_WAVE, S_R0, S_STEP, S_T, S_T0, S_CNT, S_I, S_SOX = 28, 29, 30, 31, 32, 33, 34, 35
S_ONE = 36
S_XMASK, S_FC, S_FIRST, S_MORE, S_SOE = 38, 39, 41, 42, 43
S_T1, S_T2, S_T3, S_RING = 44, 45, 46, 47
S_X, S_E, S_WS, S_OUT, S_OFFS = 12, 16, 20, 24, 48
S_EW, S_ER, S_ERING, S_FFF, S_BAD = 52, 53, 54, 55, 56

PAD_X = 16383 << 7
PAD_E = 0x02000000
SOFF_BAD = 0x40000000

def mfmas(blk):
    A, E = V_A, V_EA
    out = []
    z, h = V_Z[blk], V_H[blk]
    for k in range(5):
        c = "0" if k == 0 else f"v[{z}:{z+15}]"
        w = V_WG[blk] + 4 * k
        s = A + 4 * k if k < 4 else E
        out.append(f"v_mfma_f32_32x32x16_bf16 v[{z}:{z+15}], v[{s}:{s+3}], v[{w}:{w+3}], {c}")
    for k in range(4):
        c = "0" if k == 0 else f"v[{h}:{h+15}]"
        w = V_WV[blk] + 4 * k
        out.append(f"v_mfma_f32_32x32x16_bf16 v[{h}:{h+15}], v[{A+4*k}:{A+4*k+3}], v[{w}:{w+3}], {c}")
    return out

def x_dma(slot, xen):
    out = []
    so = S_BAD if Cfg.NOX else S_SOX
    for q in range(4):
        out.append(f"s_add_u32 m0, s{S_RING}, {slot*XSLOT + q*XQ}")
        out.append(f"v_and_or_b32 v{V_XAD}, v{xen+q}, s{S_XMASK}, v{V_CO}")
        out.append(f"buffer_load_dwordx4 v{V_XAD}, s[{S_X}:{S_X+3}], s{so} offen lds")
    return out

def e_dma(een):
    nt = " nt" if Cfg.E_NT else ""
    so = S_BAD if Cfg.NOE else S_SOE
    return [f"s_add_u32 m0, s{S_ERING}, s{S_EW}",
            f"v_lshl_add_u32 v{V_XAD}, v{een}, 5, v{V_ECO}",
            f"buffer_load_dwordx4 v{V_XAD}, s[{S_E}:{S_E+3}], s{so} offen{nt} lds",
            f"s_add_u32 s{S_EW}, s{S_EW}, 1024",
            f"s_cmp_eq_u32 s{S_EW}, {NES*1024}",
            f"s_cselect_b32 s{S_EW}, 0, s{S_EW}"]

def a_read(slot, k):
    return f"ds_read_b128 v[{V_A+4*k}:{V_A+4*k+3}], v{V_RA} offset:{slot*XSLOT + 32*k}"

def e_read():
    return [f"v_add_u32 v{V_RE}, s{S_ER}, v{V_RE0}",
            f"s_add_u32 s{S_ER}, s{S_ER}, 1024",
            f"ds_read_b128 v[{V_EA}:{V_EA+3}], v{V_RE}",
            f"s_cmp_eq_u32 s{S_ER}, {NES*1024}",
            f"s_cselect_b32 s{S_ER}, 0, s{S_ER}"]

def xa_read(u):
    return [f"ds_read_b64 v[{V_XAV+2*g}:{V_XAV+2*g+1}], v{V_GA[u]+g} offset:{L_XA}" for g in range(4)]

def gen_loop(a):
    def stages(blk, u):
        z, h = V_Z[blk], V_H[blk]
        ex = [f"v_exp_f32 v{z+i}, v{z+i}" for i in range(16)]
        rc = [f"v_rcp_f32 v{z+i}, v{z+i}" for i in range(16)]
        sel = "op_sel_hi:[1,0]" if blk == 0 else "op_sel:[0,1] op_sel_hi:[1,1]"
        st1 = [f"v_pk_add_f32 v[{z+i}:{z+i+1}], v[{z+i}:{z+i+1}], v[{V_XAV+2*(i//4)}:{V_XAV+2*(i//4)+1}] {sel}" for i in range(0, 16, 2)]
        st2 = [f"v_pk_add_f32 v[{z+i}:{z+i+1}], v[{z+i}:{z+i+1}], s[{S_ONE}:{S_ONE+1}]" for i in range(0, 16, 2)]
        st3 = []
        for g in range(4):
            st3.append(f"v_pk_mul_f32 v[{z+4*g}:{z+4*g+1}], v[{z+4*g}:{z+4*g+1}], v[{h+4*g}:{h+4*g+1}]")
        for g in range(4):
            st3.append(f"v_pk_fma_f32 v[{z+4*g}:{z+4*g+1}], v[{z+4*g+2}:{z+4*g+3}], v[{h+4*g+2}:{h+4*g+3}], v[{z+4*g}:{z+4*g+1}]")
        for g in range(4):
            st3.append(f"v_add_f32 v{z+4*g}, v{z+4*g}, v{z+4*g+1}")
        for g in range(4):
            st3.append(f"v_cvt_f64_f32 v[{V_S+2*g}:{V_S+2*g+1}], v{z+4*g}")
        for g in range(4):
            st3.append(f"ds_add_f64 v{V_GA[u]+g}, v[{V_S+2*g}:{V_S+2*g+1}] offset:{L_AGG + blk*PL}")
        return st1, ex, st2, rc, st3

    if Cfg.BENCH: a(f"s_mov_b32 s{S_CNT}, {Cfg.BENCH}")
    a(";STAMP 5")
    if Cfg.ALIGN:
        a(".p2align 6")
        for _ in range(Cfg.ALIGN - 1): a("s_nop 0")
    a("L_loop:")
    for u in range(2):
        st1, ex, st2, rc, st3 = stages(0, u)
        mf = mfmas(1)
        a(f"ds_read_b128 v[{V_XEN}:{V_XEN+3}], v{V_XLA} offset:{128*u}")
        a(f"ds_read_b32 v{V_EEN}, v{V_ELA} offset:{128*u}")
        a(f"ds_read_b128 v[{V_GNR}:{V_GNR+3}], v{V_GNA} offset:{16*u}")
        a(f"s_add_u32 s{S_T1}, s{S_I}, 3")
        a(f"s_cmp_lt_u32 s{S_T1}, s{S_CNT}")
        a(f"s_cselect_b32 s{S_SOX}, 0, s{S_BAD}")
        a(f"s_add_u32 s{S_T1}, s{S_I}, 4")
        a(f"s_cmp_lt_u32 s{S_T1}, s{S_CNT}")
        a(f"s_cselect_b32 s{S_SOE}, 0, s{S_BAD}")
        a("s_waitcnt lgkmcnt(7)")
        a(st1)
        for i in range(4):
            a(mf[i]); a(ex[4*i:4*i+4])
        a(st2)
        a(mf[4]); a(rc[0:3])
        a("s_waitcnt vmcnt(6)")
        a(e_read())
        for i in range(1, 5):
            a(mf[4+i])
            a(a_read(1 - u, i - 1))
            a(rc[3*i:3*i+3])
        a(rc[15])
        a("s_waitcnt lgkmcnt(5)")
        for g in range(4):
            a(f"v_add_u32 v{V_GA[1-u]+g}, v{V_GNR+g}, v{V_C8}")
        a(st3)
        st1, ex, st2, rc, st3 = stages(1, u)
        mf = mfmas(0)
        a(st1)
        a(xa_read(1 - u))
        a("s_waitcnt lgkmcnt(8)")
        xd = x_dma(1 - u, V_XEN)
        for i in range(4):
            a(mf[i]); a(xd[3*i:3*i+3]); a(ex[4*i:4*i+4])
        a(e_dma(V_EEN))
        a(st2)
        for i in range(5):
            a(mf[4+i]); a(rc[3*i:3*i+3])
        a(rc[15])
        a(f"s_add_u32 s{S_I}, s{S_I}, 1")
        a(f"s_cmp_ge_u32 s{S_I}, s{S_CNT}")
        a(st3)
        if u == 0:
            a("s_cbranch_scc1 L_done")
        else:
            inc = 0 if Cfg.BENCH else 1
            a(f"v_add_u32 v{V_XLA}, {256*inc}, v{V_XLA}")
            a(f"v_add_u32 v{V_ELA}, {256*inc}, v{V_ELA}")
            a(f"v_add_u32 v{V_GNA}, {32*inc}, v{V_GNA}")
            a("s_cbranch_scc0 L_loop")
    a("L_done:")
    i0 = a.l.index("L_loop:")
    def keep(x):
        t = x.strip()
        if Cfg.NOVM and (t.startswith("buffer_load")): return False
        if Cfg.NOADD and (t.startswith("ds_add_f64") or t.startswith("v_cvt_f64") or t.startswith("v_add_f32")): return False
        if Cfg.NOLDS and t.startswith("ds_"): return False
        if Cfg.NOCOMP and t.split()[0] in ("v_exp_f32", "v_rcp_f32", "v_pk_add_f32", "v_pk_fma_f32", "v_pk_mul_f32", "v_mfma_f32_32x32x16_bf16"): return False
        return True
    a.l[i0:] = [x for x in a.l[i0:] if keep(x)]

def gen_k2():
    a = Asm()
    a(f"""
    .globl main_kernel
    .p2align 8
    .type main_kernel,@function
main_kernel:
    s_cmp_ge_u32 s2, {NB}
    s_cbranch_scc1 L_k2_end
    ;STAMP 0
    s_load_dwordx2 s[10:11], s[0:1], 72
    s_load_dwordx4 s[4:7], s[0:1], 0
    s_load_dwordx2 s[8:9], s[0:1], 56
    v_lshrrev_b32 v{V_TMP}, 6, v0
    v_and_b32 v{V_LANE}, 63, v0
    v_readfirstlane_b32 s{S_WAVE}, v{V_TMP}
    v_lshrrev_b32 v{V_WB}, 1, v0
    v_lshlrev_b32 v{V_TMP}, 10, v{V_WB}
    s_and_b32 s{S_T1}, s2, 7
    s_lshl_b32 s{S_T1}, s{S_T1}, 5
    s_lshr_b32 s{S_T2}, s2, 3
    s_add_u32 s{S_T1}, s{S_T1}, s{S_T2}
    s_lshl_b32 s{S_T1}, s{S_T1}, 2
    s_mov_b32 s{S_OFFS+2}, {NP*1024}
    s_mov_b32 s{S_OFFS+3}, 0x00020000
    v_lshrrev_b32 v{V_H16}, 5, v{V_LANE}
    v_lshlrev_b32 v{V_H16}, 4, v{V_H16}
    v_and_b32 v{V_C4}, 31, v0
    v_lshlrev_b32 v{V_C4}, 2, v{V_C4}
    v_lshlrev_b32 v{V_C8}, 1, v{V_C4}
    v_lshlrev_b32 v{V_L16}, 4, v{V_LANE}
    v_lshlrev_b32 v{V_L4}, 2, v{V_LANE}
    s_waitcnt lgkmcnt(0)
    s_add_u32 s{S_OFFS}, s10, {WS_OFF}
    s_addc_u32 s{S_OFFS+1}, s11, 0
    s_and_b32 s{S_OFFS+1}, s{S_OFFS+1}, 0xffff
    buffer_load_dword v{V_OFFS}, v{V_TMP}, s[{S_OFFS}:{S_OFFS+3}], s{S_T1} offen
    """)
    srd(a, S_WS, 10, 11, WS_SIZE)
    srd(a, S_X, 4, 5, NN * 128)
    a(f"""
    s_lshl_b32 s{S_T1}, s{S_WAVE}, 10
    s_add_u32 s{S_T2}, s{S_T1}, {WS_WF}
    s_add_u32 s{S_T1}, s{S_T1}, {L_RING + WSTG}
    """)
    for k in range(5):
        a(f"""s_add_u32 m0, s{S_T1}, {8192*k}
        s_add_u32 s{S_T3}, s{S_T2}, {8192*k}
        buffer_load_dwordx4 v{V_L16}, s[{S_WS}:{S_WS+3}], s{S_T3} offen lds""")
    a(f"""
    s_lshr_b32 s{S_T2}, s{S_WAVE}, 2
    v_and_b32 v{V_TMP}, 31, v0
    s_lshl_b32 s{S_T3}, s{S_T2}, 5
    v_add_u32 v{V_TMP}, s{S_T3}, v{V_TMP}
    v_lshlrev_b32 v{V_TMP}, 8, v{V_TMP}
    v_add_u32 v{V_TMP}, s2, v{V_TMP}
    v_lshl_add_u32 v{V_TMP}, v{V_TMP}, 7, v{V_H16}
    """)
    for k in range(4):
        a(f"buffer_load_dwordx4 v[{V_JX+4*k}:{V_JX+4*k+3}], v{V_TMP}, s[{S_X}:{S_X+3}], 0 offen offset:{32*k}")
    srd(a, S_E, 6, 7, NE * 32)
    srd(a, S_OUT, 8, 9, NN * 128)
    a(f"""
    v_mov_b32 v{V_ONE}, 1
    s_mov_b32 s{S_ONE}, 1.0
    s_mov_b32 s{S_ONE+1}, 1.0
    s_mov_b32 s{S_XMASK}, {PAD_X}
    s_mov_b32 s{S_FC}, 0xfc
    s_mov_b32 s{S_FFF}, 0xfff
    s_mov_b32 s{S_BAD}, {SOFF_BAD}
    s_mov_b32 s{S_R0}, 0
    s_mov_b32 s{S_STEP}, 8
    s_mov_b32 s{S_FIRST}, 1
    s_mul_i32 s{S_RING}, s{S_WAVE}, {RINGW}
    s_add_u32 s{S_RING}, s{S_RING}, {L_RING}
    s_add_u32 s{S_ERING}, s{S_RING}, {2*XSLOT}
    v_and_b32 v{V_CO}, 7, v0
    v_lshlrev_b32 v{V_CO}, 4, v{V_CO}
    v_xor_b32 v{V_CO}, v{V_CO}, v{V_H16}
    v_and_b32 v{V_J}, 1, v0
    v_lshlrev_b32 v{V_ECO}, 4, v{V_J}
    v_and_b32 v{V_TMP}, 3, v0
    v_mul_u32_u24 v{V_TMP}, {XQ}, v{V_TMP}
    v_bfe_u32 v{V_TMP+1}, v0, 2, 3
    v_lshl_add_u32 v{V_TMP}, v{V_TMP+1}, 7, v{V_TMP}
    v_and_b32 v{V_TMP+1}, 16, v0
    v_xor_b32 v{V_TMP+1}, v{V_TMP+1}, v{V_H16}
    v_add3_u32 v{V_RA}, v{V_TMP}, v{V_TMP+1}, s{S_RING}
    v_lshl_add_u32 v{V_RE0}, v{V_C4}, 3, v{V_H16}
    v_add_u32 v{V_RE0}, s{S_ERING}, v{V_RE0}
    v_lshlrev_b32 v{V_SEG}, 14, v{V_WB}
    v_add_u32 v{V_SEG}, v{V_SEG}, v{V_ECO}
    v_mul_u32_u24 v{V_WB}, {CH}, v{V_WB}
L_k2_init:
    v_mov_b32 v{V_E}, 0
    v_lshlrev_b32 v{V_TMP+2}, 2, v0
    ds_write_b32 v{V_TMP+2}, v{V_E}
    v_mov_b32 v{V_AD}, {PAD_X}
    v_mov_b32 v{V_AD+1}, {PAD_X}
    v_mov_b32 v{V_AD+2}, {PAD_X}
    v_mov_b32 v{V_AD+3}, {PAD_X}
    v_mov_b32 v{V_AD+4}, {PAD_E}
    v_mov_b32 v{V_AD+5}, {PAD_E}
    v_mov_b32 v{V_AD+6}, {PAD_E}
    v_mov_b32 v{V_AD+7}, {PAD_E}
    v_lshlrev_b32 v{V_TMP+2}, 4, v0
    ds_write_b128 v{V_TMP+2}, v[{V_AD}:{V_AD+3}] offset:{L_XL}
    ds_write_b128 v{V_TMP+2}, v[{V_AD}:{V_AD+3}] offset:{L_XL+LISTN*4-8192}
    ds_write_b128 v{V_TMP+2}, v[{V_AD+4}:{V_AD+7}] offset:{L_EL}
    ds_write_b128 v{V_TMP+2}, v[{V_AD+4}:{V_AD+7}] offset:{L_EL+LISTN*4-8192}
    s_cmp_eq_u32 s{S_FIRST}, 0
    s_cbranch_scc1 L_k2_round
    s_waitcnt vmcnt(9)
    v_and_b32 v{V_TMP}, 0xffff, v{V_OFFS}
    v_lshrrev_b32 v{V_CNT}, 16, v{V_OFFS}
    v_lshl_add_u32 v{V_SEG}, v{V_TMP}, 4, v{V_SEG}
L_k2_round:
    ;STAMP 1
    s_add_u32 s{S_T1}, s{S_R0}, s{S_STEP}
    v_min_u32 v{V_REM}, s{S_T1}, v{V_CNT}
    v_subrev_u32 v{V_REM}, s{S_R0}, v{V_REM}
    v_sub_u32 v{V_REM}, v{V_REM}, v{V_J}
    s_lshl_b32 s{S_T2}, s{S_R0}, 4
    s_mov_b32 s{S_T3}, 0
    """)
    for k in range(4):
        a(f"""v_cmpx_lt_i32 vcc, {2*k}, v{V_REM}
        s_cbranch_execz L_k2_ld_done
        buffer_load_dwordx4 v[{V_E+4*k}:{V_E+4*k+3}], v{V_SEG}, s[{S_WS}:{S_WS+3}], s{S_T2} offen offset:{32*k}
        s_mov_b32 s{S_T3}, {k+1}""")
    a(f"""
L_k2_ld_done:
    s_mov_b64 exec, -1
    s_cmp_eq_u32 s{S_T3}, 4
    s_cbranch_scc1 L_k2_w4
    s_cmp_eq_u32 s{S_T3}, 3
    s_cbranch_scc1 L_k2_w3
    s_cmp_eq_u32 s{S_T3}, 2
    s_cbranch_scc1 L_k2_w2
    s_waitcnt vmcnt(0)
L_k2_w2:
    s_waitcnt vmcnt(2)
L_k2_w3:
    s_waitcnt vmcnt(3)
L_k2_w4:
    s_waitcnt vmcnt(4) lgkmcnt(0)
    s_barrier
    ;STAMP 2
    s_cmp_eq_u32 s{S_FIRST}, 0
    s_cbranch_scc1 L_k2_now
    s_and_b32 s{S_T2}, s{S_WAVE}, 3
    s_lshl_b32 s{S_T2}, s{S_T2}, 12
    s_add_u32 s{S_T2}, s{S_T2}, {L_RING + WSTG + 18*1024}
    v_add_u32 v{V_TMP}, s{S_T2}, v{V_L16}
    v_add_u32 v{V_TMP+1}, {L_RING + WSTG}, v{V_L16}
    """)
    for k in range(4):
        a(f"ds_read_b128 v[{V_JW+4*k}:{V_JW+4*k+3}], v{V_TMP} offset:{1024*k}")
    for f in range(18):
        a(f"ds_read_b128 v[{28+4*f}:{31+4*f}], v{V_TMP+1} offset:{1024*f}")
    a(f"""
L_k2_now:
    s_waitcnt vmcnt(0)
L_k2_cnt:
    ;STAMP 3
    v_cmpx_lt_u32 vcc, s{S_T1}, v{V_CNT}
    v_mov_b32 v{V_TMP}, {L_FLAG}
    ds_write_b32 v{V_TMP}, v{V_ONE}
    s_mov_b64 exec, -1
    """)
    for k in range(4):
        a(f"v_cmpx_lt_i32 vcc, {2*k}, v{V_REM}")
        a("s_cbranch_execz L_k2_cnt_done")
        for m in range(4):
            sl = 4 * k + m
            a(f"v_and_b32_sdwa v{V_AD+sl}, v{V_E+sl}, s{S_FC} dst_sel:DWORD dst_unused:UNUSED_PAD src0_sel:BYTE_3 src1_sel:DWORD")
            a(f"ds_add_rtn_u32 v{V_RK+sl}, v{V_AD+sl}, v{V_ONE} offset:{L_CNT}")
        for m in range(4):
            sl = 4 * k + m
            a(f"v_lshrrev_b32 v{V_W+2*sl}, 5, v{V_E+sl}")
            a(f"v_and_b32 v{V_W+2*sl+1}, s{S_FFF}, v{V_E+sl}")
            a(f"v_add_u32 v{V_W+2*sl+1}, v{V_W+2*sl+1}, v{V_WB}")
    a(f"""
L_k2_cnt_done:
    s_mov_b64 exec, -1
    v_mov_b32 v{V_TMP+2}, {L_FLAG}
    v_cmp_gt_u32 vcc, {NLOC}, v{V_LANE}
    s_waitcnt lgkmcnt(0)
    s_barrier
    ds_read_b32 v{V_TMP}, v{V_L4} offset:{L_CNT}
    ds_read_b32 v{V_TMP+2}, v{V_TMP+2}
    s_waitcnt lgkmcnt(0)
    v_readfirstlane_b32 s{S_MORE}, v{V_TMP+2}
    v_add_u32 v{V_TMP}, 7, v{V_TMP}
    v_and_b32 v{V_TMP}, -8, v{V_TMP}
    v_max_u32 v{V_TMP}, 8, v{V_TMP}
    v_cndmask_b32 v{V_TMP}, 0, v{V_TMP}, vcc
    v_mov_b32 v{V_TMP+1}, v{V_TMP}
    """)
    scan(a, V_TMP + 1)
    a(f"""
    s_nop 1
    v_readlane_b32 s{S_T}, v{V_TMP+1}, 63
    v_sub_u32 v{V_START}, v{V_TMP+1}, v{V_TMP}
    s_cmp_le_u32 s{S_T}, {LISTN}
    s_cbranch_scc1 L_k2_fits
    s_mov_b32 s{S_STEP}, 2
    s_waitcnt vmcnt(0)
    s_barrier
    s_cmp_eq_u32 s{S_FIRST}, 0
    s_cbranch_scc1 L_k2_init
    s_mov_b32 s{S_FIRST}, 2
    s_branch L_k2_job
L_k2_fits:
    v_mov_b32 v{V_TMP+1}, {L_RING - L_XL}
    v_lshlrev_b32 v{V_TMP}, 2, v{V_START}
    v_cndmask_b32 v{V_TMP}, v{V_TMP+1}, v{V_TMP}, vcc
    ds_write_b32 v{V_L4}, v{V_TMP} offset:{L_ST4}
    v_lshrrev_b32 v{V_TMP}, 5, v{V_START}
    v_lshlrev_b32 v{V_TMP}, 2, v{V_TMP}
    v_bfe_u32 v{V_TMP+1}, v{V_START}, 3, 2
    v_lshlrev_b32 v{V_TMP+1}, v{V_TMP+1}, v{V_ONE}
    s_mov_b64 exec, vcc
    ds_or_b32 v{V_TMP}, v{V_TMP+1} offset:{L_TM}
    s_mov_b64 exec, -1
    v_cndmask_b32 v{V_START}, -1, v{V_START}, vcc
    s_add_u32 s{S_T}, s{S_T}, 31
    s_lshr_b32 s{S_T}, s{S_T}, 5
    s_lshr_b32 s{S_T1}, s{S_T}, 3
    s_and_b32 s{S_T2}, s{S_T}, 7
    s_cmp_lt_u32 s{S_WAVE}, s{S_T2}
    s_cselect_b32 s{S_T3}, 1, 0
    s_add_u32 s{S_CNT}, s{S_T1}, s{S_T3}
    s_mul_i32 s{S_T0}, s{S_WAVE}, s{S_T1}
    s_min_u32 s{S_T3}, s{S_WAVE}, s{S_T2}
    s_add_u32 s{S_T0}, s{S_T0}, s{S_T3}
    s_lshl_b32 s{S_T2}, s{S_T0}, 2
    v_and_b32 v{V_TMP}, 0xfc, v{V_LANE}
    v_add_u32 v{V_TMP}, s{S_T2}, v{V_TMP}
    s_waitcnt lgkmcnt(0)
    ds_read_b32 v{V_TMP+3}, v{V_TMP} offset:{L_TM}
    """)
    for k in range(4):
        a(f"v_cmpx_lt_i32 vcc, {2*k}, v{V_REM}")
        a("s_cbranch_execz L_k2_rd_done")
        if k == 3: a("s_waitcnt lgkmcnt(8)")
        for m in range(4):
            sl = 4 * k + m
            a(f"ds_read_b32 v{V_AD+sl}, v{V_AD+sl} offset:{L_ST4}")
    a(f"""
L_k2_rd_done:
    s_mov_b64 exec, -1
    s_lshl_b32 s{S_T1}, s{S_T0}, 5
    v_cmp_gt_u32 vcc, s{S_T1}, v{V_START}
    v_and_b32 v{V_TMP}, 3, v0
    s_waitcnt lgkmcnt(0)
    s_bcnt1_i32_b64 s{S_T3}, vcc
    s_sub_u32 s{S_T3}, s{S_T3}, 1
    v_bfe_u32 v{V_TMP+3}, v{V_TMP+3}, v{V_TMP}, 1
    """)
    for k in range(4):
        a(f"v_cmpx_lt_i32 vcc, {2*k}, v{V_REM}")
        a("s_cbranch_execz L_k2_pl_done")
        for m in range(4):
            sl = 4 * k + m
            a(f"v_lshl_add_u32 v{V_AD+sl}, v{V_RK+sl}, 2, v{V_AD+sl}")
            a(f"ds_write2st64_b32 v{V_AD+sl}, v{V_W+2*sl}, v{V_W+2*sl+1} offset0:{L_XL//256} offset1:{L_EL//256}")
    a(f"""
L_k2_pl_done:
    s_mov_b64 exec, -1
    s_nop 3
    """)
    scan(a, V_TMP + 3)
    a(f"""
    s_lshl_b32 s{S_T1}, s{S_WAVE}, 8
    s_add_u32 s{S_T1}, s{S_T1}, {L_GN}
    v_add_u32 v{V_TMP+3}, s{S_T3}, v{V_TMP+3}
    v_lshlrev_b32 v{V_TMP+3}, 8, v{V_TMP+3}
    v_add_u32 v{V_TMP}, s{S_T1}, v{V_L4}
    ds_write_b32 v{V_TMP}, v{V_TMP+3}
    v_mov_b32 v{V_GNA}, s{S_T1}
    s_lshl_b32 s{S_T1}, s{S_T0}, 7
    s_add_u32 s{S_T2}, s{S_T1}, {L_XL}
    s_add_u32 s{S_T1}, s{S_T1}, {L_EL}
    v_lshrrev_b32 v{V_XLA}, 3, v{V_LANE}
    v_lshl_add_u32 v{V_XLA}, v{V_XLA}, 4, s{S_T2}
    v_lshrrev_b32 v{V_ELA}, 1, v{V_LANE}
    v_lshl_add_u32 v{V_ELA}, v{V_ELA}, 2, s{S_T1}
    s_mov_b32 s{S_EW}, 0
    s_mov_b32 s{S_ER}, 0
    s_mov_b32 s{S_I}, 0
    s_waitcnt lgkmcnt(0)
    s_barrier
    ;STAMP 4
    """)
    PX = V_Z[1]
    PE = V_Z[1] + 12
    def valid(sreg, t):
        a(f"s_cmp_lt_u32 {t}, s{S_CNT}")
        a(f"s_cselect_b32 s{sreg}, 0, s{S_BAD}")
    for t in range(4):
        a(f"ds_read_b32 v{PE+t}, v{V_ELA} offset:{128*t}")
    for t in range(3):
        a(f"ds_read_b128 v[{PX+4*t}:{PX+4*t+3}], v{V_XLA} offset:{128*t}")
    a(f"ds_read_b128 v[{V_GNR}:{V_GNR+3}], v{V_GNA}")
    a(f"v_add_u32 v{V_XLA}, {128*3}, v{V_XLA}")
    a(f"v_add_u32 v{V_ELA}, {128*4}, v{V_ELA}")
    a(f"v_add_u32 v{V_GNA}, 16, v{V_GNA}")
    valid(S_SOE, 0); valid(S_SOX, 0)
    a("s_waitcnt lgkmcnt(3)")
    a(e_dma(PE))
    a(x_dma(0, PX))
    valid(S_SOE, 1); valid(S_SOX, 1)
    a("s_waitcnt lgkmcnt(0)")
    a(e_dma(PE + 1))
    a(x_dma(1, PX + 4))
    valid(S_SOE, 2)
    a(e_dma(PE + 2))
    for g in range(4):
        a(f"v_add_u32 v{V_GA[0]+g}, v{V_GNR+g}, v{V_C8}")
    a(f"""
    s_cmp_eq_u32 s{S_FIRST}, 0
    s_cbranch_scc1 L_k2_nojob
L_k2_job:
    """)
    for k in range(4):
        c = "0" if k == 0 else f"v[{V_JC}:{V_JC+15}]"
        a(f"v_mfma_f32_32x32x16_bf16 v[{V_JC}:{V_JC+15}], v[{V_JX+4*k}:{V_JX+4*k+3}], v[{V_JW+4*k}:{V_JW+4*k+3}], {c}")
    a(f"""
    s_lshr_b32 s{S_T1}, s{S_WAVE}, 2
    s_lshl_b32 s{S_T1}, s{S_T1}, 13
    s_and_b32 s{S_T2}, s{S_WAVE}, 1
    v_lshlrev_b32 v{V_TMP}, 6, v{V_H16}
    v_add3_u32 v{V_TMP}, v{V_TMP}, v{V_C8}, s{S_T1}
    s_bitcmp1_b32 s{S_WAVE}, 1
    s_cbranch_scc1 L_k2_jobu
    s_lshl_b32 s{S_T2}, s{S_T2}, 2
    s_mov_b32 s{S_T3}, 0x{f2u(-LOG2E):08x}
    v_add_u32 v{V_TMP}, s{S_T2}, v{V_TMP}
    s_cmp_lt_u32 s{S_WAVE}, 4
    s_nop 3
    """)
    for i in range(16):
        if i == 8:
            a(f"""s_cbranch_scc1 L_k2_job2
            s_mov_b32 exec_hi, 0
            L_k2_job2:""")
        if i == 10:
            a(f"""s_cbranch_scc0 L_k2_job3""")
        a(f"v_mul_f32 v{V_JC+i}, s{S_T3}, v{V_JC+i}")
        a(f"ds_write_b32 v{V_TMP}, v{V_JC+i} offset:{L_XA + ((i//4)*8 + i%4)*256}")
    a(f"""
    s_branch L_k2_job3
L_k2_jobu:
    s_mul_i32 s{S_T2}, s{S_T2}, {PL}
    v_add_u32 v{V_TMP}, s{S_T2}, v{V_TMP}
    s_cmp_lt_u32 s{S_WAVE}, 4
    s_nop 4
    """)
    for i in range(16):
        if i == 8:
            a(f"""s_cbranch_scc1 L_k2_job4
            s_mov_b32 exec_hi, 0
            L_k2_job4:""")
        if i == 10:
            a(f"""s_cbranch_scc0 L_k2_job3""")
        a(f"v_cvt_f64_f32 v[{V_JX+2*(i%8)}:{V_JX+2*(i%8)+1}], v{V_JC+i}")
        a(f"ds_write_b64 v{V_TMP}, v[{V_JX+2*(i%8)}:{V_JX+2*(i%8)+1}] offset:{L_AGG + ((i//4)*8 + i%4)*256}")
    a(f"""
L_k2_job3:
    s_mov_b64 exec, -1
    s_cmp_eq_u32 s{S_FIRST}, 2
    s_mov_b32 s{S_FIRST}, 0
    s_cbranch_scc1 L_k2_init
    s_waitcnt lgkmcnt(0)
    s_barrier
L_k2_nojob:
    s_cmp_eq_u32 s{S_CNT}, 0
    s_cbranch_scc1 L_k2_after
    """)
    a(xa_read(0))
    valid(S_SOE, 3); valid(S_SOX, 2)
    a("s_waitcnt vmcnt(6)")
    a(e_read())
    for k in range(4): a(a_read(0, k))
    a("s_waitcnt lgkmcnt(0)")
    a(x_dma(0, PX + 8))
    a(e_dma(PE + 3))
    a(mfmas(0))
    a("s_nop 7"); a("s_nop 7")
    gen_loop(a)
    a(f"""
L_k2_after:
    ;STAMP 6
    s_waitcnt vmcnt(0) lgkmcnt(0)
    s_barrier
    s_cmp_eq_u32 s{S_MORE}, 0
    s_cbranch_scc1 L_k2_epi
    s_add_u32 s{S_R0}, s{S_R0}, s{S_STEP}
    s_branch L_k2_init
L_k2_epi:
    ;STAMP 7
    ;STAMPOUT
    v_cmp_gt_u32 vcc, {NLOC*8}, v0
    s_and_saveexec_b64 s[{S_T1}:{S_T1+1}], vcc
    s_cbranch_execz L_k2_end
    v_lshrrev_b32 v{V_TMP+2}, 3, v0
    v_and_b32 v{V_TMP+3}, 7, v0
    v_bfe_u32 v{V_TMP}, v0, 2, 1
    v_mul_u32_u24 v{V_TMP}, {PL}, v{V_TMP}
    v_lshl_add_u32 v{V_TMP}, v{V_TMP+2}, 8, v{V_TMP}
    v_and_b32 v{V_TMP+1}, 3, v0
    v_lshl_add_u32 v{V_TMP}, v{V_TMP+1}, 6, v{V_TMP}
    ds_read_b128 v[120:123], v{V_TMP} offset:{L_AGG}
    ds_read_b128 v[124:127], v{V_TMP} offset:{L_AGG+16}
    ds_read_b128 v[128:131], v{V_TMP} offset:{L_AGG+32}
    ds_read_b128 v[132:135], v{V_TMP} offset:{L_AGG+48}
    v_lshlrev_b32 v{V_TMP+2}, 8, v{V_TMP+2}
    v_add_u32 v{V_TMP+2}, s2, v{V_TMP+2}
    v_lshlrev_b32 v{V_TMP+2}, 7, v{V_TMP+2}
    v_lshl_add_u32 v{V_TMP+2}, v{V_TMP+3}, 4, v{V_TMP+2}
    s_mov_b32 s{S_T3}, 0x{f2u(-LOG2E):08x}
    s_waitcnt lgkmcnt(0)
    """)
    for i in range(8):
        a(f"v_cvt_f32_f64 v{100+i}, v[{120+2*i}:{121+2*i}]")
    for i in range(8):
        a(f"v_mul_f32 v{108+i}, s{S_T3}, v{100+i}")
    for i in range(8):
        a(f"v_exp_f32 v{108+i}, v{108+i}")
    for i in range(8):
        a(f"v_add_f32 v{108+i}, 1.0, v{108+i}")
    for i in range(8):
        a(f"v_rcp_f32 v{108+i}, v{108+i}")
    for i in range(8):
        a(f"v_mul_f32 v{100+i}, v{100+i}, v{108+i}")
    for i in range(4):
        a(f"v_cvt_pk_bf16_f32 v{116+i}, v{100+2*i}, v{101+2*i}")
    a(f"""
    buffer_store_dwordx4 v[116:119], v{V_TMP+2}, s[{S_OUT}:{S_OUT+3}], 0 offen
L_k2_end:
    s_endpgm
    """)
    return a.text()

HDR = open("standalone__edge_featured_mpnn_egc__graph.s.ref").read().split("; Override launch")[0]

def build(path):
    s = HDR
    s += f"; @launch kernel=bin_kernel grid=({NP+3},1,1) block=({K1_BLOCK},1,1) lds={K1_LDS}\n"
    s += f"; @launch kernel=main_kernel grid=({NB},1,1) block=(512,1,1) lds={K2_LDS}\n"
    s += '.amdgcn_target "amdgcn-amd-amdhsa--gfx950"\n.text\n'
    s += gen_k1() + gen_k2()
    s += '.section .rodata,"a"\n' + kd("bin_kernel", 48, 40) + kd("main_kernel", 256, 80)
    out = []
    for line in s.split("\n"):
        t = line.strip()
        if t.startswith(";STAMP "):
            if Cfg.STAMP:
                n = int(t.split()[1]); out.append(f"    s_memtime s[{60+2*n}:{61+2*n}]")
        elif t == ";STAMPOUT":
            if Cfg.STAMP:
                out.append("    s_waitcnt lgkmcnt(0)")
                for k in range(16): out.append(f"    v_mov_b32 v{100+k}, s{60+k}")
                out.append(f"    s_lshl_b32 s{S_T1}, s2, 3")
                out.append(f"    s_add_u32 s{S_T1}, s{S_T1}, s{S_WAVE}")
                out.append(f"    s_lshl_b32 s{S_T1}, s{S_T1}, 6")
                out.append(f"    s_add_u32 s{S_T1}, s{S_T1}, {WS_STAMP}")
                out.append(f"    v_mov_b32 v116, 0")
                out.append(f"    s_mov_b64 exec, 1")
                for k in range(4): out.append(f"    buffer_store_dwordx4 v[{100+4*k}:{103+4*k}], v116, s[{S_WS}:{S_WS+3}], s{S_T1} offen offset:{16*k}")
                out.append(f"    s_mov_b64 exec, -1")
                out.append("    s_nop 4")
        else: out.append(line)
    open(path, "w").write("\n".join(out))

if __name__ == "__main__":
    out = "standalone__edge_featured_mpnn_egc__graph.s"
    for arg in sys.argv[1:]:
        if "=" in arg:
            k, v = arg.split("=")
            if k == "out": out = v
            else: setattr(Cfg, k, eval(v))
    build(out)
    print("wrote", out, "K2_LDS", K2_LDS)
```

```python
import sys, struct

def f2u(x): return struct.unpack("<I", struct.pack("<f", x))[0]
LOG2E = 1.4426950408889634

class Cfg:
    E_NT = False
    STAMP = False
    SB = False
    RT = False
    DROP = ()
    DROPP = ()
    K1XPF = 0
    K1EPF = 0
    RAMP = 0
    EXPF = 0
    EB = (0, 4, 8, 11, 16)
    RB = (0, 3, 6, 9, 11, 16)
    RB1 = (0, 3, 6, 9, 11, 16)
    XPF = 0
    EPF = 4
    LATE = 1
    NOE = False
    NOX = False
    ALIGN = 1
    BENCH = 0
    NOVM = False
    NOADD = False
    NOLDS = False
    NOCOMP = False
    PERM = 0
    PSC = ''

NE, NN = 800000, 12500
CH, NP, NB = 3200, 250, 256
SEGSTR = 16384
WS_ENT = 0
WS_OFF = 0x400000
WS_WF = 0x440000
WS_STAMP = 0x480000
WS_EP = 0x800000
WS_SIZE = 0x800000 + 250 * 131072

class Asm:
    def __init__(self): self.l = []
    def __call__(self, s):
        if isinstance(s, (list, tuple)):
            for x in s: self(x)
            return
        for line in s.strip("\n").split("\n"):
            line = line.strip()
            if not line: continue
            if line.endswith(":"): self.l.append(line)
            else: self.l.append("    " + line)
    def text(self): return "\n".join(self.l) + "\n"

def srd(a, d, lo, hi, nrec):
    a(f"""s_mov_b32 s{d}, s{lo}
    s_and_b32 s{d+1}, s{hi}, 0xffff
    s_mov_b32 s{d+2}, {nrec}
    s_mov_b32 s{d+3}, 0x00020000""")

def scan(a, v):
    for sh in (1, 2, 4, 8):
        a("s_nop 1")
        a(f"v_add_u32_dpp v{v}, v{v}, v{v} row_shr:{sh} row_mask:0xf bank_mask:0xf bound_ctrl:0")
    a("s_nop 1")
    a(f"v_add_u32_dpp v{v}, v{v}, v{v} row_bcast:15 row_mask:0xa bank_mask:0xf")
    a("s_nop 1")
    a(f"v_add_u32_dpp v{v}, v{v}, v{v} row_bcast:31 row_mask:0xc bank_mask:0xf")

def kd(name, nv, ns=102):
    return f""".p2align 6
.amdhsa_kernel {name}
  .amdhsa_next_free_vgpr {nv}
  .amdhsa_next_free_sgpr {ns}
  .amdhsa_accum_offset {(nv+3)//4*4}
  .amdhsa_group_segment_fixed_size 0
  .amdhsa_kernarg_size 80
  .amdhsa_user_sgpr_count 2
  .amdhsa_user_sgpr_kernarg_segment_ptr 1
  .amdhsa_system_sgpr_workgroup_id_x 1
.end_amdhsa_kernel
"""

K1_BLOCK = 832
K1_LDS = 2048 + SEGSTR + 13312
L1_POS = 2048 + SEGSTR
def gen_k1():
    a = Asm()
    a(f"""
    .globl bin_kernel
    .p2align 8
    .type bin_kernel,@function
bin_kernel:
    s_cmp_ge_u32 s2, {NP}
    s_cbranch_scc1 L_k1_w
    ;K1S 0
    s_load_dwordx4 s[4:7], s[0:1], 16
    s_load_dwordx2 s[8:9], s[0:1], 72
    s_load_dwordx2 s[10:11], s[0:1], 8
    s_load_dwordx2 s[40:41], s[0:1], 0
    v_lshlrev_b32 v3, 4, v0
    s_mul_i32 s3, s2, {CH*4}
    v_cmp_gt_u32 vcc, {CH//4}, v0
    v_and_b32 v1, 255, v0
    v_lshlrev_b32 v1, 2, v1
    v_mov_b32 v2, 0
    ds_write_b32 v1, v2
    v_mov_b32 v44, -1
    v_mov_b32 v45, -1
    v_mov_b32 v46, -1
    v_mov_b32 v47, -1
    ds_write_b128 v3, v[44:47] offset:2048
    v_lshlrev_b32 v2, 2, v1
    ds_write_b128 v2, v[44:47] offset:{2048 + 768*16}
    v_readfirstlane_b32 s28, v0
    s_mov_b32 s34, 0x7c
    s_mov_b32 s14, {NE*4}
    s_mov_b32 s15, 0x00020000
    s_mov_b32 s18, {NE*4}
    s_mov_b32 s19, 0x00020000
    s_waitcnt lgkmcnt(0)
    s_mov_b32 s16, s6
    s_and_b32 s17, s7, 0xffff
    s_mov_b32 s12, s4
    s_and_b32 s13, s5, 0xffff
    s_and_saveexec_b64 s[24:25], vcc
    buffer_load_dwordx4 v[4:7], v3, s[16:19], s3 offen
    buffer_load_dwordx4 v[8:11], v3, s[12:15], s3 offen
    """)
    srd(a, 20, 8, 9, WS_SIZE)
    NPF = 0
    if Cfg.K1XPF:
        NPF += 1
        a(f"""
        s_and_b32 s41, s41, 0xffff
        s_mov_b32 s42, {NN*128}
        s_mov_b32 s43, 0x00020000
        s_lshr_b32 s35, s2, 3
        s_mul_i32 s35, s35, {404*128}
        v_lshlrev_b32 v48, 7, v0
        s_movk_i32 s38, 404
        v_cmp_gt_u32 s[36:37], s38, v0
        v_mov_b32 v49, 0x40000000
        s_nop 0
        v_cndmask_b32 v48, v49, v48, s[36:37]
        buffer_load_dword v50, v48, s[40:43], s35 offen
        """)
    if Cfg.K1EPF:
        NPF += 1
        a(f"""
        s_mul_i32 s35, s2, {CH*32}
        s_add_u32 s36, s10, s35
        s_addc_u32 s37, s11, 0
        s_and_b32 s37, s37, 0xffff
        s_mov_b32 s38, {Cfg.K1EPF*128}
        s_mov_b32 s39, 0x00020000
        v_lshlrev_b32 v48, 7, v0
        buffer_load_dword v51, v48, s[36:39], 0 offen
        """)
    if Cfg.PERM:
        a(f"""
        s_mov_b64 exec, -1
        s_mul_i32 s35, s2, {CH*32}
        s_add_u32 s36, s10, s35
        s_addc_u32 s37, s11, 0
        s_and_b32 s37, s37, 0xffff
        s_mov_b32 s38, {CH*32}
        s_mov_b32 s39, 0x00020000
        """)
        for k in range(Cfg.PERM):
            a(f"s_mov_b32 s35, {K1_BLOCK*16*k}")
            a(f"buffer_load_dwordx4 v[{48+4*k}:{51+4*k}], v3, s[36:39], s35 offen")
        a("s_mov_b64 exec, vcc")
    a(f"""
    s_barrier
    v_lshlrev_b32 v12, 2, v0
    v_mov_b32 v13, 1
    s_waitcnt vmcnt({1+Cfg.PERM+NPF})
    ;K1S 1
    """)
    for j in range(4):
        a(f"""v_and_b32 v{14+j}, 7, v{4+j}
        v_lshlrev_b32 v{14+j}, 7, v{14+j}
        v_lshrrev_b32 v{18+j}, 1, v{4+j}
        v_and_or_b32 v{14+j}, v{18+j}, s34, v{14+j}
        ds_add_rtn_u32 v{18+j}, v{14+j}, v13""")
    for j in range(4):
        a(f"""v_lshrrev_b32 v{4+j}, 8, v{4+j}
        v_lshl_or_b32 v{4+j}, v{4+j}, 26, v12""")
    a(f"s_waitcnt vmcnt({Cfg.PERM+NPF})")
    for j in range(4):
        a(f"v_lshl_or_b32 v{8+j}, v{8+j}, 12, {j}")
        a(f"v_or_b32 v{4+j}, v{4+j}, v{8+j}")
    a(f"""
    s_waitcnt lgkmcnt(0)
    s_barrier
    s_mov_b64 s[26:27], exec
    s_mov_b64 exec, -1
    v_and_b32 v22, 63, v0
    v_lshlrev_b32 v23, 4, v22
    ds_read_b128 v[24:27], v23
    s_waitcnt lgkmcnt(0)
    """)
    for j in range(4):
        a(f"""v_add_u32 v{24+j}, 3, v{24+j}
        v_lshrrev_b32 v{24+j}, 2, v{24+j}""")
    a(f"""
    v_add_u32 v28, v24, v25
    v_add_u32 v29, v28, v26
    v_add_u32 v30, v29, v27
    v_mov_b32 v31, v30
    """)
    scan(a, 31)
    a(f"""
    v_sub_u32 v32, v31, v30
    v_add_u32 v33, v32, v24
    v_add_u32 v34, v32, v28
    v_add_u32 v35, v32, v29
    v_readlane_b32 s33, v31, 63
    ds_write_b128 v23, v[32:35] offset:1024
    s_cmp_ge_u32 s28, 64
    s_cbranch_scc1 L_k1_nooff
    v_lshl_or_b32 v36, v24, 16, v32
    v_lshl_or_b32 v37, v25, 16, v33
    v_lshl_or_b32 v38, v26, 16, v34
    v_lshl_or_b32 v39, v27, 16, v35
    s_lshl_b32 s32, s2, 10
    s_add_u32 s32, s32, {WS_OFF}
    buffer_store_dwordx4 v[36:39], v23, s[20:23], s32 offen
L_k1_nooff:
    s_mov_b64 exec, s[26:27]
    s_waitcnt lgkmcnt(0)
    """)
    for j in range(4):
        a(f"ds_read_b32 v{40+j}, v{14+j} offset:1024")
    for j in range(4):
        a(f"v_lshlrev_b32 v{18+j}, 2, v{18+j}")
    for j in range(4):
        a(f"""s_waitcnt lgkmcnt({3-j})
        v_lshl_add_u32 v{40+j}, v{40+j}, 4, v{18+j}""")
    for j in range(4):
        a(f"ds_write_b32 v{40+j}, v{4+j} offset:2048")
    if Cfg.PERM:
        a(f"ds_write_b128 v3, v[40:43] offset:{L1_POS}")
    a(f"""
    s_mov_b64 exec, -1
    s_lshl_b32 s3, s2, 14
    v_add_u32 v2, {K1_BLOCK}, v0
    s_waitcnt lgkmcnt(0)
    s_barrier
    ds_read_b128 v[44:47], v3 offset:2048
    ds_read_b128 v[36:39], v3 offset:{2048 + K1_BLOCK*16}
    v_cmp_gt_u32 vcc, s33, v2
    s_add_u32 s32, s3, {K1_BLOCK*16}
    s_waitcnt lgkmcnt(1)
    buffer_store_dwordx4 v[44:47], v3, s[20:23], s3 offen
    s_and_saveexec_b64 s[24:25], vcc
    s_cbranch_execz L_k1_e
    s_waitcnt lgkmcnt(0)
    buffer_store_dwordx4 v[36:39], v3, s[20:23], s32 offen
L_k1_e:
    s_mov_b64 exec, -1
    ;K1S 2
    ;K1OUT
    """)
    if Cfg.PERM:
        a(f"""
        v_lshrrev_b32 v1, 1, v0
        v_lshlrev_b32 v1, 2, v1
        v_and_b32 v2, 1, v0
        v_lshlrev_b32 v2, 4, v2
        s_lshl_b32 s3, s2, 17
        s_add_u32 s3, s3, {WS_EP}
        """)
        for k in range(Cfg.PERM):
            a(f"ds_read_b32 v{4+k}, v1 offset:{L1_POS + K1_BLOCK*2*k}")
        for k in range(Cfg.PERM):
            a(f"s_waitcnt lgkmcnt({Cfg.PERM-1-k})")
            a(f"v_lshl_add_u32 v{4+k}, v{4+k}, 3, v2")
        for k in range(Cfg.PERM):
            if k == 7:
                a(f"v_cmp_gt_u32 vcc, {6400 - 7*K1_BLOCK}, v0")
                a("s_and_saveexec_b64 s[24:25], vcc")
                a("s_cbranch_execz L_k1_end")
            a(f"s_waitcnt vmcnt({Cfg.PERM-1})")
            a(f"buffer_store_dwordx4 v[{48+4*k}:{51+4*k}], v{4+k}, s[20:23], s3 offen{Cfg.PSC}")
    a(f"""
    s_endpgm
L_k1_w:
    s_cmp_ge_u32 s2, {NP+3}
    s_cbranch_scc1 L_k1_end
    s_load_dwordx4 s[4:7], s[0:1], 32
    s_load_dwordx2 s[8:9], s[0:1], 48
    s_load_dwordx2 s[10:11], s[0:1], 72
    v_lshrrev_b32 v1, 6, v0
    s_nop 0
    v_readfirstlane_b32 s28, v1
    s_sub_u32 s3, s2, {NP}
    s_mul_i32 s3, s3, 13
    s_add_u32 s28, s28, s3
    s_cmp_ge_u32 s28, 34
    s_cbranch_scc1 L_k1_end
    s_waitcnt lgkmcnt(0)
    s_mov_b32 s12, s8
    s_mov_b32 s13, s9
    s_mov_b32 s14, {144*128}
    s_mov_b32 s33, 0x{f2u(-LOG2E):08x}
    s_cmp_ge_u32 s28, 5
    s_cselect_b32 s30, 1, 0
    s_mul_i32 s31, s30, 5
    s_sub_u32 s31, s28, s31
    s_add_u32 s31, s31, 4
    s_cmp_lt_u32 s28, 10
    s_cbranch_scc1 L_k1_wgo
    s_mov_b32 s33, 1.0
    s_sub_u32 s29, s28, 10
    s_and_b32 s31, s29, 3
    s_lshr_b32 s30, s29, 2
    s_and_b32 s30, s30, 1
    s_cmp_ge_u32 s28, 18
    s_cbranch_scc1 L_k1_w2
    s_mov_b32 s12, s6
    s_mov_b32 s13, s7
    s_mov_b32 s14, {64*128}
    s_branch L_k1_wgo
L_k1_w2:
    s_cmp_lt_u32 s28, 26
    s_cbranch_scc1 L_k1_wgo
    s_mov_b32 s12, s4
    s_mov_b32 s13, s5
    s_mov_b32 s14, {64*128}
L_k1_wgo:
    s_and_b32 s13, s13, 0xffff
    s_mov_b32 s15, 0x00020000
    """)
    srd(a, 20, 10, 11, WS_SIZE)
    a(f"""
    s_lshl_b32 s31, s31, 11
    s_lshl_b32 s30, s30, 6
    s_add_u32 s31, s31, s30
    v_and_b32 v1, 63, v0
    v_lshrrev_b32 v2, 5, v1
    v_lshlrev_b32 v2, 10, v2
    v_and_b32 v3, 31, v0
    v_lshl_add_u32 v2, v3, 1, v2
    """)
    for j in range(8):
        a(f"buffer_load_ushort v{4+j}, v2, s[12:15], s31 offen offset:{j*128}")
    a(f"""
    v_lshlrev_b32 v1, 4, v1
    s_lshl_b32 s32, s28, 10
    s_add_u32 s32, s32, {WS_WF}
    s_waitcnt vmcnt(0)
    """)
    for j in range(8):
        a(f"""v_lshlrev_b32 v{4+j}, 16, v{4+j}
        v_mul_f32 v{4+j}, s33, v{4+j}""")
    for j in range(4):
        a(f"v_cvt_pk_bf16_f32 v{12+j}, v{4+2*j}, v{5+2*j}")
    a(f"""
    buffer_store_dwordx4 v[12:15], v1, s[20:23], s32 offen
L_k1_end:
    s_endpgm
    """)
    return a.text()

L_CNT, L_ST4, L_TM, L_FLAG = 0, 256, 512, 1280
L_TDT = 2048
L_GUARD = 2048 + 1024
LISTN = 3584
L_XL = 4352
L_EL = L_XL + LISTN * 4
PL = 50 * 256
L_XA = L_EL + LISTN * 4
L_AGG = L_XA + PL
L_RING = L_AGG + 2 * PL
XQ = 1056
XSLOT = 4 * XQ
NES = 3
RINGW = 2 * XSLOT + NES * 1024
K2_LDS = L_RING + 8 * RINGW
NLOC = 49
L_WST = L_XA
assert 34 * 1024 <= 3 * PL
assert L_XA % 256 == 0
assert RINGW + 2*XSLOT <= 2*XSLOT + LISTN*4 and 2*XSLOT + LISTN*4 + 3072 <= 2*RINGW + XSLOT
assert K2_LDS <= 163840 and L_AGG + PL < 65536 and L_XL % 256 == 0 and L_EL % 256 == 0

V_H16, V_C4, V_XLA, V_ELA, V_TD = 1, 2, 3, 4, 5
V_CO, V_ECO, V_RA, V_RE0, V_RE = 6, 7, 8, 9, 10
V_EEN, V_XAD, V_LANE = 11, 12, 13
V_C8 = 14
V_RAC = 15
V_TMP = 16
V_S = 20
V_WG = [28, 48]; V_WV = [68, 84]
V_Z = [100, 132]; V_H = [116, 148]
V_A = 164
V_EA = 180
V_XEN = 184
V_GA = 188
V_GAN = 189
V_C8X = 240
V_EAV = 192
V_GG = 196
V_E = 100; V_AD = 116; V_RK = 132; V_W = 164
V_JW = 208; V_JX = 224; V_JC = 148
V_OFFS = 244; V_CNT = 245; V_SEG = 246; V_WB = 247; V_REM = 248; V_ONE = 249; V_START = 250; V_J = 251; V_L16 = 252; V_L4 = 253; V_JUNK = 254

S_WAVE, S_R0, S_STEP, S_T, S_T0, S_CNT, S_I, S_SOX = 28, 29, 30, 31, 32, 33, 34, 35
S_ONE = 36
S_XMASK, S_FC, S_FIRST, S_MORE, S_SOE = 38, 39, 41, 42, 43
S_T1, S_T2, S_T3, S_RING = 44, 45, 46, 47
S_X, S_E, S_WS, S_OUT, S_OFFS = 12, 16, 20, 24, 48
S_EW, S_ER, S_ERING, S_FFF, S_BAD = 52, 53, 54, 55, 56
S_TD, S_XD, S_XS, S_SAFE = 40, 57, 58, 59
S_XQ = [12, 88, 92, 96]
S_EC, S_EEND = 52, 53
V_M256 = 242
S_SM = 76
S_EPF = 78
S_F2 = 79
S_VC = 100
V_BADV = 241

PAD_X = 16383 << 7
PAD_E = 0x02000000
SOFF_BAD = 0x40000000

def mfmas(blk):
    A, E = V_A, V_EA
    out = []
    z, h = V_Z[blk], V_H[blk]
    for k in range(5):
        c = "0" if k == 0 else f"v[{z}:{z+15}]"
        w = V_WG[blk] + 4 * k
        s = A + 4 * k if k < 4 else E
        out.append(f"v_mfma_f32_32x32x16_bf16 v[{z}:{z+15}], v[{s}:{s+3}], v[{w}:{w+3}], {c}")
    for k in range(4):
        c = "0" if k == 0 else f"v[{h}:{h+15}]"
        w = V_WV[blk] + 4 * k
        out.append(f"v_mfma_f32_32x32x16_bf16 v[{h}:{h+15}], v[{A+4*k}:{A+4*k+3}], v[{w}:{w+3}], {c}")
    return out

def x_dma(xen):
    out = []
    so = f"s{S_BAD}" if Cfg.NOX else "0"
    for q in range(4):
        out.append([f"v_and_or_b32 v{V_XAD}, v{xen+q}, s{S_XMASK}, v{V_CO}",
                    f"buffer_load_dwordx4 v{V_XAD}, s[{S_XQ[q]}:{S_XQ[q]+3}], {so} offen offset:{q*XQ} lds"])
    return out

def x_m0(): return [f"s_mov_b32 m0, s{S_XS}"]
def x_toggle(): return [f"s_xor_b32 s{S_XS}, s{S_XS}, s{S_XD}"]

def e_adv():
    return [f"s_add_u32 s{S_EC}, s{S_EC}, 1024",
            f"s_cmp_eq_u32 s{S_EC}, s{S_EEND}",
            f"s_cselect_b32 s{S_EC}, s{S_ERING}, s{S_EC}"]

def e_dma(een):
    nt = " nt" if Cfg.E_NT else ""
    so = f"s{S_BAD}" if Cfg.NOE else "0"
    return [f"s_mov_b32 m0, s{S_EC}",
            f"v_lshl_add_u32 v{V_XAD}, v{een}, 5, v{V_ECO}",
            f"buffer_load_dwordx4 v{V_XAD}, s[{S_E}:{S_E+3}], {so} offen{nt} lds"]

def a_read(k):
    return f"ds_read_b128 v[{V_A+4*k}:{V_A+4*k+3}], v{V_RAC} offset:{32*k}"

def e_read():
    return [f"v_add_u32 v{V_RE}, s{S_EC}, v{V_RE0}",
            f"ds_read_b128 v[{V_EA}:{V_EA+3}], v{V_RE}"]

def gan(): return f"v_and_or_b32 v{V_GAN}, s{S_TD}, v{V_M256}, v{V_C8}"

def ea_read(ga):
    return f"ds_read2_b64 v[{V_EAV}:{V_EAV+3}], v{ga} offset0:0 offset1:32"

AGO = L_AGG - L_XA

def dispatch(a):
    a(f"s_and_b32 s{S_T1}, s{S_TD}, 0xff")
    a("s_cbranch_scc0 L_B0")
    for code, lab in ((1, "L_B1"), (2, "L_B2"), (4, "L_B3"), (8, "L_done")):
        a(f"s_cmp_eq_u32 s{S_T1}, {code}")
        a(f"s_cbranch_scc1 {lab}")
    a("s_branch L_BG")

def gen_body(a, gb):
    gen = gb == "G"
    def stages(blk):
        z, h = V_Z[blk], V_H[blk]
        ex = [f"v_exp_f32 v{z+i}, v{z+i}" for i in range(16)]
        rc = [f"v_rcp_f32 v{z+i}, v{z+i}" for i in range(16)]
        sel = "op_sel_hi:[1,0,1]" if blk == 0 else "op_sel:[0,1,0] op_sel_hi:[1,1,1]"
        st1, st2, st3 = [], [], []
        def flush(acc, ga, extra):
            return [f"v_add_f32 v{acc}, v{acc}, v{acc+1}",
                    f"v_cvt_f64_f32 v[{V_S+2*(extra%4)}:{V_S+2*(extra%4)+1}], v{acc}",
                    f"ds_add_f64 v{ga}, v[{V_S+2*(extra%4)}:{V_S+2*(extra%4)+1}] offset:{AGO + blk*PL + (256*extra if not gen else 0)}"]
        if not gen:
            for i in range(0, 16, 2):
                ea = V_EAV + (2 if (gb and i // 4 >= gb) else 0)
                st2.append(f"v_pk_fma_f32 v[{z+i}:{z+i+1}], v[{z+i}:{z+i+1}], v[{ea}:{ea+1}], s[{S_ONE}:{S_ONE+1}] {sel}")
            segs = [(0, 4)] if not gb else [(0, gb), (gb, 4)]
            tails = []
            for si, (g0, g1) in enumerate(segs):
                acc = z + 4 * g0
                for i in range(4 * g0, 4 * g1, 2):
                    if i == 4 * g0:
                        st3.append(f"v_pk_mul_f32 v[{acc}:{acc+1}], v[{z+i}:{z+i+1}], v[{h+i}:{h+i+1}]")
                    else:
                        st3.append(f"v_pk_fma_f32 v[{acc}:{acc+1}], v[{z+i}:{z+i+1}], v[{h+i}:{h+i+1}], v[{acc}:{acc+1}]")
                tails.append(flush(acc, V_GA, si))
            for k in range(3):
                for t in tails: st3.append(t[k])
            nf = len(segs)
        else:
            for g in range(4):
                st1.append(f"ds_read_b32 v{V_GG+8+g}, v{V_GG+g} offset:{4*blk}")
            st1.append("s_waitcnt lgkmcnt(0)")
            for g in range(4):
                st1.append(f"v_cndmask_b32 v{V_GG+4+g}, 0, v{V_GG+8+g}, s[{S_SM}:{S_SM+1}]")
                st1.append(f"v_cndmask_b32 v{V_GG+8+g}, v{V_GG+8+g}, 1.0, s[{S_SM}:{S_SM+1}]")
            for i in range(16):
                st1.append(f"v_add_f32 v{z+i}, v{z+i}, v{V_GG+4+i//4}")
                st2.append(f"v_fma_f32 v{z+i}, v{z+i}, v{V_GG+8+i//4}, 1.0")
            for g in range(4):
                acc = z + 4 * g
                st3.append(f"v_pk_mul_f32 v[{acc}:{acc+1}], v[{acc}:{acc+1}], v[{h+4*g}:{h+4*g+1}]")
                st3.append(f"v_pk_fma_f32 v[{acc}:{acc+1}], v[{acc+2}:{acc+3}], v[{h+4*g+2}:{h+4*g+3}], v[{acc}:{acc+1}]")
                st3 += flush(acc, V_GG + g, g)
            nf = 4
        return st1, ex, st2, rc, st3, nf

    inc = 0 if Cfg.BENCH else 1024
    a(".p2align 6")
    a(f"L_B{gb}:")
    st1, ex, st2, rc, st3, nf = stages(0)
    mf = mfmas(1)
    if gen:
        a(f"v_mov_b32 v{V_GG}, v{V_GAN}")
        for g in range(1, 4):
            a(f"s_bitcmp1_b32 s{S_TD}, {g-1}")
            a(f"s_cselect_b32 s{S_T1}, 256, 0")
            a(f"v_add_u32 v{V_GG+g}, s{S_T1}, v{V_GG+g-1}")
    a(st1)
    if Cfg.BENCH:
        rl = [f"s_cmp_ge_u32 s{S_I}, {Cfg.BENCH}", f"s_cselect_b32 s{S_TD}, 8, s{S_TD}"]
    else:
        rl = [f"v_readlane_b32 s{S_TD}, v{V_TD}, s{S_I}"]
    fill = [f"s_add_u32 s{S_I}, s{S_I}, 1",
            f"ds_read_b128 v[{V_XEN}:{V_XEN+3}], v{V_XLA}",
            f"ds_read_b32 v{V_EEN}, v{V_ELA}"] + x_toggle() + e_adv() + [rl]
    eb = Cfg.EB
    for i in range(4):
        a(mf[i])
        for e in ex[eb[i]:eb[i+1]]:
            a(e)
            if fill: a(fill.pop(0))
    a("s_waitcnt lgkmcnt(2)")
    a(st2)
    a(mf[4]); a(rc[0])
    a(f"v_add_u32 v{V_RAC}, s{S_XS}, v{V_RA}")
    a(rc[1])
    a(e_read()[0])
    a(rc[2])
    a("s_waitcnt vmcnt(6)")
    a(e_read()[1])
    rb = Cfg.RB
    a(rc[3:rb[1]])
    for i in range(1, 5):
        a(mf[4+i])
        a(a_read(i - 1))
        a(rc[rb[i]:rb[i+1]])
        if i == 3: a(f"v_mov_b32 v{V_GA}, v{V_GAN}")
    a("s_nop 0")
    a(st3)
    st1, ex, st2, rc, st3, nf1 = stages(1)
    mf = mfmas(0)
    a(st1)
    xd = x_dma(V_XEN)
    for i in range(4):
        a(f"s_waitcnt lgkmcnt({3-i+nf})")
        a(mf[i]); a(ex[eb[i]:eb[i+1]])
    a(x_m0())
    a(xd[0])
    a(st2)
    a(gan())
    rb = Cfg.RB1
    a(mf[4]); a(ea_read(V_GAN)); a(rc[rb[0]:rb[1]])
    for i in range(1, 4):
        a(mf[4+i]); a(xd[i]); a(rc[rb[i]:rb[i+1]])
        if i == 2: a(f"v_add_u32 v{V_XLA}, {inc}, v{V_XLA}")
        if i == 3: a(f"v_add_u32 v{V_ELA}, {inc}, v{V_ELA}")
    a(mf[8]); a(e_dma(V_EEN)); a(rc[rb[4]:rb[5]])
    a("s_nop 0")
    a(st3)
    dispatch(a)

def gen_loop(a):
    a(";STAMP 5")
    i0 = len(a.l)
    dispatch(a)
    for gb in (0, 1, 2, 3, "G"):
        gen_body(a, gb)
    a("L_done:")
    def keep(x):
        t = x.strip()
        if Cfg.NOVM and (t.startswith("buffer_load")): return False
        if Cfg.NOADD and (t.startswith("ds_add_f64") or t.startswith("v_cvt_f64") or t.startswith("v_add_f32")): return False
        if Cfg.NOLDS and t.startswith("ds_"): return False
        if t.split()[0] in Cfg.DROP: return False
        if any(t.startswith(p) for p in Cfg.DROPP): return False
        if Cfg.NOCOMP and t.split()[0] in ("v_exp_f32", "v_rcp_f32", "v_pk_add_f32", "v_pk_fma_f32", "v_pk_mul_f32", "v_mfma_f32_32x32x16_bf16"): return False
        return True
    a.l[i0:] = [x for x in a.l[i0:] if keep(x)]

def gen_k2():
    a = Asm()
    WDMA_WAIT = 4 + (1 if Cfg.XPF else 0)
    a(f"""
    .globl main_kernel
    .p2align 8
    .type main_kernel,@function
main_kernel:
    s_cmp_ge_u32 s2, {NB}
    s_cbranch_scc1 L_k2_end
    ;STAMP 0
    s_load_dwordx2 s[10:11], s[0:1], 72
    s_load_dwordx4 s[4:7], s[0:1], 0
    s_load_dwordx2 s[8:9], s[0:1], 56
    v_lshrrev_b32 v{V_TMP}, 6, v0
    v_and_b32 v{V_LANE}, 63, v0
    v_readfirstlane_b32 s{S_WAVE}, v{V_TMP}
    v_lshrrev_b32 v{V_WB}, 1, v0
    v_lshlrev_b32 v{V_TMP}, 10, v{V_WB}
    s_and_b32 s{S_T1}, s2, 7
    s_lshl_b32 s{S_T1}, s{S_T1}, 5
    s_lshr_b32 s{S_T2}, s2, 3
    s_add_u32 s{S_T1}, s{S_T1}, s{S_T2}
    s_lshl_b32 s{S_T1}, s{S_T1}, 2
    s_mov_b32 s{S_OFFS+2}, {NP*1024}
    s_mov_b32 s{S_OFFS+3}, 0x00020000
    v_lshrrev_b32 v{V_H16}, 5, v{V_LANE}
    v_lshlrev_b32 v{V_H16}, 4, v{V_H16}
    v_and_b32 v{V_C4}, 31, v0
    v_lshlrev_b32 v{V_C4}, 2, v{V_C4}
    v_lshlrev_b32 v{V_C8}, 1, v{V_C4}
    v_lshlrev_b32 v{V_L16}, 4, v{V_LANE}
    v_lshlrev_b32 v{V_L4}, 2, v{V_LANE}
    s_waitcnt lgkmcnt(0)
    s_add_u32 s{S_OFFS}, s10, {WS_OFF}
    s_addc_u32 s{S_OFFS+1}, s11, 0
    s_and_b32 s{S_OFFS+1}, s{S_OFFS+1}, 0xffff
    buffer_load_dword v{V_OFFS}, v{V_TMP}, s[{S_OFFS}:{S_OFFS+3}], s{S_T1} offen
    """)
    srd(a, S_WS, 10, 11, WS_SIZE)
    srd(a, S_X, 4, 5, NN * 128)
    srd(a, S_E, 6, 7, NE * 32)
    srd(a, S_OUT, 8, 9, NN * 128)
    a(f"""
    v_mov_b32 v{V_ONE}, 1
    s_mov_b32 s{S_ONE}, 1.0
    s_mov_b32 s{S_ONE+1}, 1.0
    s_mov_b32 s{S_XMASK}, {PAD_X}
    s_mov_b32 s{S_FC}, 0xfc
    s_mov_b32 s{S_FFF}, 0xfff
    s_mov_b32 s{S_BAD}, {SOFF_BAD}
    s_mov_b32 s{S_R0}, 0
    s_mov_b32 s{S_EPF}, {Cfg.EPF << 26}
    v_mov_b32 v{V_BADV}, 0x40000000
    s_mov_b32 s{S_STEP}, 8
    s_mov_b32 s{S_FIRST}, 1
    s_mov_b32 s{S_F2}, 1
    s_mul_i32 s{S_RING}, s{S_WAVE}, {RINGW}
    s_add_u32 s{S_RING}, s{S_RING}, {L_RING}
    s_add_u32 s{S_ERING}, s{S_RING}, {2*XSLOT}
    s_add_u32 s{S_EEND}, s{S_ERING}, {NES*1024}
    s_add_u32 s{S_XD}, s{S_RING}, {XSLOT}
    s_xor_b32 s{S_XD}, s{S_XD}, s{S_RING}
    v_mov_b32 v{V_M256}, 0xffffff00
    """)
    for q in range(1, 4):
        d = S_XQ[q]
        a(f"""s_sub_u32 s{d}, s4, {q*XQ}
        s_subb_u32 s{d+1}, s5, 0
        s_and_b32 s{d+1}, s{d+1}, 0xffff
        s_mov_b32 s{d+2}, {NN*128 + q*XQ}
        s_mov_b32 s{d+3}, 0x00020000""")
    a(f"""
    v_and_b32 v{V_CO}, 7, v0
    v_lshlrev_b32 v{V_CO}, 4, v{V_CO}
    v_xor_b32 v{V_CO}, v{V_CO}, v{V_H16}
    v_and_b32 v{V_J}, 1, v0
    v_lshlrev_b32 v{V_ECO}, 4, v{V_J}
    v_and_b32 v{V_TMP}, 3, v0
    v_mul_u32_u24 v{V_TMP}, {XQ}, v{V_TMP}
    v_bfe_u32 v{V_TMP+1}, v0, 2, 3
    v_lshl_add_u32 v{V_TMP}, v{V_TMP+1}, 7, v{V_TMP}
    v_and_b32 v{V_TMP+1}, 16, v0
    v_xor_b32 v{V_TMP+1}, v{V_TMP+1}, v{V_H16}
    v_add_u32 v{V_RA}, v{V_TMP}, v{V_TMP+1}
    v_mov_b32 v{V_TMP}, 0
    v_mov_b32 v{V_TMP+1}, {L_GUARD}
    ds_write_b32 v{V_TMP+1}, v{V_TMP}
    v_lshl_add_u32 v{V_RE0}, v{V_C4}, 3, v{V_H16}
    v_lshlrev_b32 v{V_SEG}, 14, v{V_WB}
    v_add_u32 v{V_SEG}, v{V_SEG}, v{V_ECO}
    v_mul_u32_u24 v{V_WB}, {CH}, v{V_WB}
L_k2_init:
    v_mov_b32 v{V_E}, 0
    v_lshlrev_b32 v{V_TMP+2}, 2, v0
    ds_write_b32 v{V_TMP+2}, v{V_E}
    v_mov_b32 v{V_AD}, {PAD_X}
    v_mov_b32 v{V_AD+1}, {PAD_X}
    v_mov_b32 v{V_AD+2}, {PAD_X}
    v_mov_b32 v{V_AD+3}, {PAD_X}
    v_mov_b32 v{V_AD+4}, {PAD_E}
    v_mov_b32 v{V_AD+5}, {PAD_E}
    v_mov_b32 v{V_AD+6}, {PAD_E}
    v_mov_b32 v{V_AD+7}, {PAD_E}
    v_lshlrev_b32 v{V_TMP+2}, 4, v0
    ds_write_b128 v{V_TMP+2}, v[{V_AD}:{V_AD+3}] offset:{L_XL}
    ds_write_b128 v{V_TMP+2}, v[{V_AD}:{V_AD+3}] offset:{L_XL+LISTN*4-8192}
    ds_write_b128 v{V_TMP+2}, v[{V_AD+4}:{V_AD+7}] offset:{L_EL}
    ds_write_b128 v{V_TMP+2}, v[{V_AD+4}:{V_AD+7}] offset:{L_EL+LISTN*4-8192}
    s_waitcnt lgkmcnt(0)
    s_barrier
    s_cmp_eq_u32 s{S_FIRST}, 0
    s_cbranch_scc1 L_k2_round
    s_waitcnt vmcnt(0)
    v_and_b32 v{V_TMP}, 0xffff, v{V_OFFS}
    v_lshrrev_b32 v{V_CNT}, 16, v{V_OFFS}
    v_lshl_add_u32 v{V_SEG}, v{V_TMP}, 4, v{V_SEG}
L_k2_round:
    ;STAMP 1
    s_add_u32 s{S_T1}, s{S_R0}, s{S_STEP}
    v_min_u32 v{V_REM}, s{S_T1}, v{V_CNT}
    v_subrev_u32 v{V_REM}, s{S_R0}, v{V_REM}
    v_sub_u32 v{V_REM}, v{V_REM}, v{V_J}
    s_lshl_b32 s{S_T2}, s{S_R0}, 4
    """)
    for k in range(4):
        a(f"""v_cmpx_lt_i32 vcc, {2*k}, v{V_REM}
        s_cbranch_execz L_k2_ld_done
        buffer_load_dwordx4 v[{V_E+4*k}:{V_E+4*k+3}], v{V_SEG}, s[{S_WS}:{S_WS+3}], s{S_T2} offen offset:{32*k}""")
    a(f"""
L_k2_ld_done:
    s_mov_b64 exec, -1
    s_cmp_eq_u32 s{S_FIRST}, 0
    s_cbranch_scc1 L_k2_now
    s_mov_b32 s{S_FIRST}, 0
    """)
    a(f"""
    s_lshl_b32 s{S_T0}, s{S_WAVE}, 10
    s_add_u32 s{S_T2}, s{S_T0}, {WS_WF}
    s_add_u32 s{S_T0}, s{S_T0}, {L_WST}
    """)
    for k in range(5):
        if k == 4:
            a(f"""s_cmp_ge_u32 s{S_WAVE}, 2
            s_cbranch_scc1 L_k2_now0""")
        a(f"""s_add_u32 m0, s{S_T0}, {8192*k}
        s_add_u32 s{S_T3}, s{S_T2}, {8192*k}
        buffer_load_dwordx4 v{V_L16}, s[{S_WS}:{S_WS+3}], s{S_T3} offen lds""")
    a(f"""
L_k2_now0:
    s_lshr_b32 s{S_T2}, s{S_WAVE}, 2
    s_lshl_b32 s{S_T2}, s{S_T2}, 13
    s_add_u32 s{S_T2}, s{S_T2}, s2
    v_lshrrev_b32 v{V_TMP}, 3, v{V_LANE}
    v_lshl_add_u32 v{V_TMP}, v{V_TMP}, 10, s{S_T2}
    v_lshlrev_b32 v{V_JX}, 7, v{V_TMP}
    v_add_u32 v{V_JX+1}, {256*128}, v{V_JX}
    v_add_u32 v{V_JX+2}, {512*128}, v{V_JX}
    v_add_u32 v{V_JX+3}, {768*128}, v{V_JX}
    """)
    nox = Cfg.NOX; Cfg.NOX = False
    a(f"s_add_u32 m0, s{S_RING}, {XSLOT}"); a(x_dma(V_JX))
    Cfg.NOX = nox
    a(f"""
    ;STAMP 2
    s_waitcnt vmcnt(4)
    s_branch L_k2_cnt
L_k2_now:
    s_waitcnt vmcnt(0)
L_k2_cnt:
    ;STAMP 3
    ;STAMPB 0
    v_cmpx_lt_u32 vcc, s{S_T1}, v{V_CNT}
    v_mov_b32 v{V_TMP}, {L_FLAG}
    ds_write_b32 v{V_TMP}, v{V_ONE}
    s_mov_b64 exec, -1
    """)
    for k in range(4):
        a(f"v_cmpx_lt_i32 vcc, {2*k}, v{V_REM}")
        a("s_cbranch_execz L_k2_cnt_done")
        for m in range(4):
            sl = 4 * k + m
            a(f"v_and_b32_sdwa v{V_AD+sl}, v{V_E+sl}, s{S_FC} dst_sel:DWORD dst_unused:UNUSED_PAD src0_sel:BYTE_3 src1_sel:DWORD")
            a(f"ds_add_rtn_u32 v{V_RK+sl}, v{V_AD+sl}, v{V_ONE} offset:{L_CNT}")
        for m in range(4):
            sl = 4 * k + m
            a(f"v_lshrrev_b32 v{V_W+2*sl}, 5, v{V_E+sl}")
            a(f"v_and_b32 v{V_W+2*sl+1}, s{S_FFF}, v{V_E+sl}")
            a(f"v_add_u32 v{V_W+2*sl+1}, v{V_W+2*sl+1}, v{V_WB}")
        if Cfg.EPF:
            for m in range(4):
                a(f"v_cmp_gt_u32 s[{80+2*m}:{81+2*m}], s{S_EPF}, v{V_E+4*k+m}")
            for m in range(4):
                a(f"v_lshlrev_b32 v{V_TMP+m}, 5, v{V_W+2*(4*k+m)+1}")
            for m in range(4):
                a(f"v_cndmask_b32 v{V_TMP+m}, v{V_BADV}, v{V_TMP+m}, s[{80+2*m}:{81+2*m}]")
                a(f"buffer_load_dword v{V_JUNK}, v{V_TMP+m}, s[{S_E}:{S_E+3}], 0 offen")
            if Cfg.EXPF:
                for m in range(4):
                    a(f"v_and_b32 v{V_TMP+m}, s{S_XMASK}, v{V_W+2*(4*k+m)}")
                for m in range(4):
                    a(f"v_cndmask_b32 v{V_TMP+m}, v{V_BADV}, v{V_TMP+m}, s[{80+2*m}:{81+2*m}]")
                    a(f"buffer_load_dword v{V_JUNK}, v{V_TMP+m}, s[{S_X}:{S_X+3}], 0 offen")
    a(f"""
L_k2_cnt_done:
    ;STAMPB 1
    s_mov_b64 exec, -1
    v_mov_b32 v{V_TMP+2}, {L_FLAG}
    v_cmp_gt_u32 vcc, {NLOC}, v{V_LANE}
    s_waitcnt lgkmcnt(0)
    ;STAMPB 2
    s_barrier
    ;STAMPB 3
    ds_read_b32 v{V_TMP}, v{V_L4} offset:{L_CNT}
    ds_read_b32 v{V_TMP+2}, v{V_TMP+2}
    s_waitcnt lgkmcnt(0)
    v_readfirstlane_b32 s{S_MORE}, v{V_TMP+2}
    v_add_u32 v{V_TMP}, 7, v{V_TMP}
    v_and_b32 v{V_TMP}, -8, v{V_TMP}
    v_max_u32 v{V_TMP}, 8, v{V_TMP}
    v_cndmask_b32 v{V_TMP}, 0, v{V_TMP}, vcc
    v_mov_b32 v{V_TMP+1}, v{V_TMP}
    """)
    scan(a, V_TMP + 1)
    a(f"""
    s_nop 1
    v_readlane_b32 s{S_T}, v{V_TMP+1}, 63
    v_sub_u32 v{V_START}, v{V_TMP+1}, v{V_TMP}
    s_cmp_le_u32 s{S_T}, {LISTN}
    s_cbranch_scc1 L_k2_fits
    s_mov_b32 s{S_STEP}, 2
    s_barrier
    s_branch L_k2_init
L_k2_fits:
    ;STAMPB 4
    v_mov_b32 v{V_TMP+1}, {L_RING + 2*XSLOT - L_XL}
    v_lshlrev_b32 v{V_TMP}, 2, v{V_START}
    v_cndmask_b32 v{V_TMP}, v{V_TMP+1}, v{V_TMP}, vcc
    ds_write_b32 v{V_L4}, v{V_TMP} offset:{L_ST4}
    v_lshrrev_b32 v{V_TMP}, 5, v{V_START}
    v_lshlrev_b32 v{V_TMP}, 2, v{V_TMP}
    v_bfe_u32 v{V_TMP+1}, v{V_START}, 3, 2
    v_lshlrev_b32 v{V_TMP+1}, v{V_TMP+1}, v{V_ONE}
    s_mov_b64 exec, vcc
    ds_or_b32 v{V_TMP}, v{V_TMP+1} offset:{L_TM}
    s_mov_b64 exec, -1
    v_cndmask_b32 v{V_START}, -1, v{V_START}, vcc
    s_add_u32 s{S_T}, s{S_T}, 31
    s_lshr_b32 s{S_T}, s{S_T}, 5
    s_add_u32 s{S_CNT}, s{S_T}, 7
    s_sub_u32 s{S_CNT}, s{S_CNT}, s{S_WAVE}
    s_lshr_b32 s{S_CNT}, s{S_CNT}, 3
    v_lshlrev_b32 v{V_TMP}, 1, v{V_L4}
    s_waitcnt lgkmcnt(0)
    ds_read_b64 v[{V_S}:{V_S+1}], v{V_TMP} offset:{L_TM}
    """)
    for k in range(4):
        a(f"v_cmpx_lt_i32 vcc, {2*k}, v{V_REM}")
        a("s_cbranch_execz L_k2_rd_done")
        if k == 3: a("s_waitcnt lgkmcnt(8)")
        for m in range(4):
            sl = 4 * k + m
            a(f"ds_read_b32 v{V_AD+sl}, v{V_AD+sl} offset:{L_ST4}")
    a(f"""
L_k2_rd_done:
    s_mov_b64 exec, -1
    s_waitcnt lgkmcnt(0)
    ;STAMPB 5
    v_bcnt_u32_b32 v{V_S+2}, v{V_S}, 0
    v_bcnt_u32_b32 v{V_S+3}, v{V_S+1}, v{V_S+2}
    v_mov_b32 v{V_TMP+3}, v{V_S+3}
    """)
    for k in range(4):
        a(f"v_cmpx_lt_i32 vcc, {2*k}, v{V_REM}")
        a("s_cbranch_execz L_k2_pl_done")
        for m in range(4):
            sl = 4 * k + m
            a(f"v_lshl_add_u32 v{V_AD+sl}, v{V_RK+sl}, 2, v{V_AD+sl}")
            a(f"ds_write2st64_b32 v{V_AD+sl}, v{V_W+2*sl}, v{V_W+2*sl+1} offset0:{L_XL//256} offset1:{L_EL//256}")
    a(f"""
L_k2_pl_done:
    ;STAMPB 6
    s_mov_b64 exec, -1
    s_nop 3
    """)
    scan(a, V_TMP + 3)
    a(f"""
    v_sub_u32 v{V_TMP+3}, v{V_TMP+3}, v{V_S+3}
    v_and_b32 v{V_S+4}, 1, v{V_S}
    v_add_u32 v{V_TMP+3}, {L_XA//256 - 1}, v{V_TMP+3}
    v_add_u32 v{V_S+4}, v{V_S+4}, v{V_TMP+3}
    v_and_b32 v{V_S+5}, 1, v{V_S+1}
    v_add3_u32 v{V_S+5}, v{V_S+5}, v{V_TMP+3}, v{V_S+2}
    v_lshrrev_b32 v{V_S}, 1, v{V_S}
    v_lshrrev_b32 v{V_S+1}, 1, v{V_S+1}
    v_lshl_or_b32 v{V_S+4}, v{V_S+4}, 8, v{V_S}
    v_lshl_or_b32 v{V_S+5}, v{V_S+5}, 8, v{V_S+1}
    ds_write_b64 v{V_TMP}, v[{V_S+4}:{V_S+5}] offset:{L_TDT}
    s_lshl_b32 s{S_T1}, s{S_WAVE}, 2
    v_and_b32 v{V_TMP+1}, 15, v{V_LANE}
    v_lshl_add_u32 v{V_TMP+1}, v{V_TMP+1}, 5, s{S_T1}
    v_cmp_gt_u32 vcc, s{S_CNT}, v{V_LANE}
    s_lshl_b32 s{S_T1}, s{S_WAVE}, 7
    s_add_u32 s{S_T2}, s{S_T1}, {L_XL}
    s_add_u32 s{S_T1}, s{S_T1}, {L_EL}
    v_lshrrev_b32 v{V_XLA}, 3, v{V_LANE}
    v_lshl_add_u32 v{V_XLA}, v{V_XLA}, 4, s{S_T2}
    v_lshrrev_b32 v{V_ELA}, 1, v{V_LANE}
    v_lshl_add_u32 v{V_ELA}, v{V_ELA}, 2, s{S_T1}
    s_waitcnt lgkmcnt(0)
    ds_read_b32 v{V_TD}, v{V_TMP+1} offset:{L_TDT}
    s_mov_b32 s{S_EC}, s{S_ERING}
    s_mov_b32 s{S_I}, 0
    s_mov_b32 s{S_XS}, s{S_RING}
    s_waitcnt lgkmcnt(0)
    s_mov_b64 s[{S_VC}:{S_VC+1}], vcc
    s_barrier
    ;STAMP 4
    ;STAMPB 7
    """)
    PX = V_Z[1]
    PE = V_Z[1] + 12
    def valid(sreg, t):
        a(f"s_cmp_lt_u32 {t}, s{S_CNT}")
        a(f"s_cselect_b32 s{sreg}, 0, s{S_BAD}")
    for t in range(4):
        a(f"ds_read_b32 v{PE+t}, v{V_ELA} offset:{1024*t}")
    for t in range(3):
        a(f"ds_read_b128 v[{PX+4*t}:{PX+4*t+3}], v{V_XLA} offset:{1024*t}")
    a(f"v_add_u32 v{V_XLA}, {1024*3}, v{V_XLA}")
    a(f"v_add_u32 v{V_ELA}, {1024*4}, v{V_ELA}")
    a("s_waitcnt lgkmcnt(2)")
    a(e_dma(PE)); a(e_adv())
    a(x_m0()); a(x_dma(PX))
    a(x_toggle())
    def rest():
        a("s_waitcnt lgkmcnt(0)")
        a(e_dma(PE + 1)); a(e_adv())
        a(x_m0()); a(x_dma(PX + 4))
        a(x_toggle())
        a(e_dma(PE + 2)); a(e_adv())
    def tdfin():
        a(f"""
        s_cmp_lg_u32 s{S_SAFE}, 0
        s_cselect_b64 s[{S_SM}:{S_SM+1}], -1, 0
        s_cselect_b32 s{S_T3}, 16, 0
        v_or_b32 v{V_TD}, s{S_T3}, v{V_TD}
        v_cndmask_b32 v{V_TD}, 8, v{V_TD}, s[{S_VC}:{S_VC+1}]
        s_nop 0
        v_readfirstlane_b32 s{S_TD}, v{V_TD}
        s_nop 1
        """)
        a(gan())
    a(f"""
    s_cmp_eq_u32 s{S_F2}, 0
    s_cbranch_scc1 L_k2_nojob1
    s_and_b32 s{S_T2}, s{S_WAVE}, 3
    s_lshl_b32 s{S_T2}, s{S_T2}, 12
    s_add_u32 s{S_T2}, s{S_T2}, {L_WST + 18*1024}
    v_add_u32 v{V_S+6}, s{S_T2}, v{V_L16}
    v_add_u32 v{V_RAC}, s{S_XS}, v{V_RA}
    """)
    for k in range(4):
        a(f"ds_read_b128 v[{V_JW+4*k}:{V_JW+4*k+3}], v{V_S+6} offset:{1024*k}")
    for f in range(18):
        a(f"ds_read_b128 v[{28+4*f}:{31+4*f}], v{V_L16} offset:{L_WST + 1024*f}")
    a(f"""
    v_mov_b32 v{V_TMP+2}, 0x42300000
    v_mov_b32 v{V_TMP+3}, {L_GUARD}
    s_waitcnt vmcnt(5)
    """)
    for k in range(4): a(a_read(k))
    for k in range(4):
        c = "0" if k == 0 else f"v[{V_JC}:{V_JC+15}]"
        a(f"s_waitcnt lgkmcnt({3-k})")
        a(f"v_mfma_f32_32x32x16_bf16 v[{V_JC}:{V_JC+15}], v[{V_A+4*k}:{V_A+4*k+3}], v[{V_JW+4*k}:{V_JW+4*k+3}], {c}")
    if not Cfg.RAMP: rest()
    else: a("s_nop 7"); a("s_nop 3")
    a(f"""
    s_bitcmp1_b32 s{S_WAVE}, 1
    s_cbranch_scc1 L_k2_nog
    v_max3_f32 v{V_TMP+1}, |v{V_JC}|, |v{V_JC+1}|, |v{V_JC+2}|
    """)
    for i in range(3, 15, 2):
        a(f"v_max3_f32 v{V_TMP+1}, |v{V_JC+i}|, |v{V_JC+i+1}|, v{V_TMP+1}")
    a(f"""
    v_max_f32 v{V_TMP+1}, |v{V_JC+15}|, v{V_TMP+1}
    v_cmpx_nle_f32 vcc, v{V_TMP+1}, v{V_TMP+2}
    ds_write_b32 v{V_TMP+3}, v{V_ONE}
    s_mov_b64 exec, -1
    s_waitcnt lgkmcnt(0)
L_k2_nog:
    s_barrier
    ds_read_b32 v{V_TMP+3}, v{V_TMP+3}
    s_waitcnt lgkmcnt(0)
    v_readfirstlane_b32 s{S_SAFE}, v{V_TMP+3}
    """)
    tdfin()
    a(f"""
    s_lshr_b32 s{S_T1}, s{S_WAVE}, 2
    s_lshl_b32 s{S_T1}, s{S_T1}, 13
    s_and_b32 s{S_T2}, s{S_WAVE}, 1
    v_lshlrev_b32 v{V_TMP}, 6, v{V_H16}
    v_add3_u32 v{V_TMP}, v{V_TMP}, v{V_C8}, s{S_T1}
    s_bitcmp1_b32 s{S_WAVE}, 1
    s_cbranch_scc1 L_k2_jobu
    s_lshl_b32 s{S_T2}, s{S_T2}, 2
    s_mov_b32 s{S_T3}, 0x{f2u(-LOG2E):08x}
    v_add_u32 v{V_TMP}, s{S_T2}, v{V_TMP}
    s_cmp_lt_u32 s{S_WAVE}, 4
    s_nop 3
    """)
    for i in range(16):
        if i == 8:
            a(f"""s_cbranch_scc1 L_k2_job2
            s_mov_b32 exec_hi, 0
            L_k2_job2:""")
        if i == 10:
            a(f"""s_cbranch_scc0 L_k2_job3""")
        a(f"v_mul_f32 v{V_JC+i}, s{S_T3}, v{V_JC+i}")
        a(f"v_exp_f32 v{V_JX+i}, v{V_JC+i}")
        a("s_nop 0")
        a(f"v_cndmask_b32 v{V_JC+i}, v{V_JX+i}, v{V_JC+i}, s[{S_SM}:{S_SM+1}]")
        a(f"ds_write_b32 v{V_TMP}, v{V_JC+i} offset:{L_XA + ((i//4)*8 + i%4)*256}")
    a(f"""
    s_branch L_k2_job3
L_k2_jobu:
    s_mul_i32 s{S_T2}, s{S_T2}, {PL}
    v_add_u32 v{V_TMP}, s{S_T2}, v{V_TMP}
    s_cmp_lt_u32 s{S_WAVE}, 4
    s_nop 4
    """)
    for i in range(16):
        if i == 8:
            a(f"""s_cbranch_scc1 L_k2_job4
            s_mov_b32 exec_hi, 0
            L_k2_job4:""")
        if i == 10:
            a(f"""s_cbranch_scc0 L_k2_job3""")
        a(f"v_cvt_f64_f32 v[{V_JX+2*(i%8)}:{V_JX+2*(i%8)+1}], v{V_JC+i}")
        a(f"ds_write_b64 v{V_TMP}, v[{V_JX+2*(i%8)}:{V_JX+2*(i%8)+1}] offset:{L_AGG + ((i//4)*8 + i%4)*256}")
    a(f"""
L_k2_job3:
    s_mov_b64 exec, -1
    s_mov_b32 s{S_F2}, 0
    s_waitcnt lgkmcnt(0)
    s_barrier
    s_branch L_k2_nojob
L_k2_nojob1:
    """)
    if not Cfg.RAMP: rest()
    tdfin()
    a(f"""
L_k2_nojob:
    s_cmp_eq_u32 s{S_CNT}, 0
    s_cbranch_scc1 L_k2_after
    """)
    a(ea_read(V_GAN))
    if not Cfg.RAMP:
        a(f"v_add_u32 v{V_RAC}, s{S_XS}, v{V_RA}")
        a("s_waitcnt vmcnt(6)")
        a(e_read())
        for k in range(4): a(a_read(k))
        a("s_waitcnt lgkmcnt(0)")
        a(x_m0()); a(x_dma(PX + 8))
        a(e_dma(PE + 3))
        a(mfmas(0))
    else:
        a(f"v_add_u32 v{V_RAC}, s{S_RING}, v{V_RA}")
        a(f"v_add_u32 v{V_RE}, s{S_ERING}, v{V_RE0}")
        a("s_waitcnt vmcnt(0)")
        a(e_read()[1])
        for k in range(4): a(a_read(k))
        a("s_waitcnt lgkmcnt(0)")
        a(mfmas(0))
        rest()
        a(x_m0()); a(x_dma(PX + 8))
        a(e_dma(PE + 3))
    a("s_nop 7"); a("s_nop 7")
    gen_loop(a)
    a(f"""
L_k2_after:
    ;STAMP 6
    s_waitcnt vmcnt(0) lgkmcnt(0)
    s_barrier
    s_cmp_eq_u32 s{S_MORE}, 0
    s_cbranch_scc1 L_k2_epi
    s_add_u32 s{S_R0}, s{S_R0}, s{S_STEP}
    s_branch L_k2_init
L_k2_epi:
    ;STAMP 7
    ;STAMPOUT
    v_cmp_gt_u32 vcc, {NLOC*8}, v0
    s_and_saveexec_b64 s[{S_T1}:{S_T1+1}], vcc
    s_cbranch_execz L_k2_end
    v_lshrrev_b32 v{V_TMP+2}, 3, v0
    v_and_b32 v{V_TMP+3}, 7, v0
    v_bfe_u32 v{V_TMP}, v0, 2, 1
    v_mul_u32_u24 v{V_TMP}, {PL}, v{V_TMP}
    v_lshl_add_u32 v{V_TMP}, v{V_TMP+2}, 8, v{V_TMP}
    v_and_b32 v{V_TMP+1}, 3, v0
    v_lshl_add_u32 v{V_TMP}, v{V_TMP+1}, 6, v{V_TMP}
    ds_read_b128 v[120:123], v{V_TMP} offset:{L_AGG}
    ds_read_b128 v[124:127], v{V_TMP} offset:{L_AGG+16}
    ds_read_b128 v[128:131], v{V_TMP} offset:{L_AGG+32}
    ds_read_b128 v[132:135], v{V_TMP} offset:{L_AGG+48}
    v_lshlrev_b32 v{V_TMP+2}, 8, v{V_TMP+2}
    v_add_u32 v{V_TMP+2}, s2, v{V_TMP+2}
    v_lshlrev_b32 v{V_TMP+2}, 7, v{V_TMP+2}
    v_lshl_add_u32 v{V_TMP+2}, v{V_TMP+3}, 4, v{V_TMP+2}
    s_mov_b32 s{S_T3}, 0x{f2u(-LOG2E):08x}
    s_waitcnt lgkmcnt(0)
    """)
    for i in range(8):
        a(f"v_cvt_f32_f64 v{100+i}, v[{120+2*i}:{121+2*i}]")
    for i in range(8):
        a(f"v_mul_f32 v{108+i}, s{S_T3}, v{100+i}")
    for i in range(8):
        a(f"v_exp_f32 v{108+i}, v{108+i}")
    for i in range(8):
        a(f"v_add_f32 v{108+i}, 1.0, v{108+i}")
    for i in range(8):
        a(f"v_rcp_f32 v{108+i}, v{108+i}")
    for i in range(8):
        a(f"v_mul_f32 v{100+i}, v{100+i}, v{108+i}")
    for i in range(4):
        a(f"v_cvt_pk_bf16_f32 v{116+i}, v{100+2*i}, v{101+2*i}")
    a(f"""
    buffer_store_dwordx4 v[116:119], v{V_TMP+2}, s[{S_OUT}:{S_OUT+3}], 0 offen
L_k2_end:
    s_endpgm
    """)
    return a.text()

HDR = open("standalone__edge_featured_mpnn_egc__graph.s.ref").read().split("; Override launch")[0]

def build(path):
    s = HDR
    s += f"; @launch kernel=bin_kernel grid=({NP+3},1,1) block=({K1_BLOCK},1,1) lds={K1_LDS}\n"
    s += f"; @launch kernel=main_kernel grid=({NB},1,1) block=(512,1,1) lds={K2_LDS}\n"
    s += '.amdgcn_target "amdgcn-amd-amdhsa--gfx950"\n.text\n'
    s += gen_k1() + gen_k2()
    s += '.section .rodata,"a"\n' + kd("bin_kernel", 80, 64) + kd("main_kernel", 256, 102)
    out = []
    for line in s.split("\n"):
        t = line.strip()
        if t.startswith(";K1S "):
            if Cfg.STAMP and Cfg.RT:
                n = int(t.split()[1]); out.append(f"    s_memrealtime s[{48+2*n}:{49+2*n}]")
        elif t == ";K1OUT":
            if Cfg.STAMP and Cfg.RT:
                out.append("    s_waitcnt vmcnt(0)")
                out.append("    s_memrealtime s[54:55]")
                out.append("    s_waitcnt lgkmcnt(0)")
                for k in range(8): out.append(f"    v_mov_b32 v{56+k}, s{48+k}")
                out.append("    s_lshr_b32 s56, s28, 6")
                out.append("    s_lshl_b32 s57, s2, 4")
                out.append("    s_add_u32 s56, s56, s57")
                out.append("    s_lshl_b32 s56, s56, 5")
                out.append(f"    s_add_u32 s56, s56, {WS_STAMP + 0x40000}")
                out.append("    v_mov_b32 v64, 0")
                out.append("    s_mov_b64 exec, 1")
                for k in range(2): out.append(f"    buffer_store_dwordx4 v[{56+4*k}:{59+4*k}], v64, s[20:23], s56 offen offset:{16*k}")
                out.append("    s_mov_b64 exec, -1")
        elif t.startswith(";STAMPB "):
            if Cfg.STAMP and Cfg.SB:
                n = int(t.split()[1]); out.append(f"    s_memtime s[{60+2*n}:{61+2*n}]")
        elif t.startswith(";STAMP "):
            if Cfg.STAMP and not Cfg.SB:
                n = int(t.split()[1])
                if Cfg.RT:
                    if n in (0, 5, 7):
                        out.append(f"    s_memtime s[{60+2*n}:{61+2*n}]")
                        m = {0: 1, 5: 2, 7: 3}[n]
                        out.append(f"    s_memrealtime s[{60+2*m}:{61+2*m}]")
                else:
                    out.append(f"    s_memtime s[{60+2*n}:{61+2*n}]")
        elif t == ";STAMPOUT":
            if Cfg.STAMP:
                out.append("    s_waitcnt lgkmcnt(0)")
                for k in range(16): out.append(f"    v_mov_b32 v{100+k}, s{60+k}")
                out.append(f"    s_lshl_b32 s{S_T1}, s2, 3")
                out.append(f"    s_add_u32 s{S_T1}, s{S_T1}, s{S_WAVE}")
                out.append(f"    s_lshl_b32 s{S_T1}, s{S_T1}, 6")
                out.append(f"    s_add_u32 s{S_T1}, s{S_T1}, {WS_STAMP}")
                out.append(f"    v_mov_b32 v116, 0")
                out.append(f"    s_mov_b64 exec, 1")
                for k in range(4): out.append(f"    buffer_store_dwordx4 v[{100+4*k}:{103+4*k}], v116, s[{S_WS}:{S_WS+3}], s{S_T1} offen offset:{16*k}")
                out.append(f"    s_mov_b64 exec, -1")
                out.append("    s_nop 4")
        else: out.append(line)
    open(path, "w").write("\n".join(out))

if __name__ == "__main__":
    out = "standalone__edge_featured_mpnn_egc__graph.s"
    for arg in sys.argv[1:]:
        if "=" in arg:
            k, v = arg.split("=")
            if k == "out": out = v
            else: setattr(Cfg, k, eval(v))
    build(out)
    print("wrote", out, "K2_LDS", K2_LDS)
```

```python
import sys, struct

def f2u(x): return struct.unpack("<I", struct.pack("<f", x))[0]
LOG2E = 1.4426950408889634

class Cfg:
    E_NT = False
    STAMP = False
    SB = False
    SC = False
    RT = False
    DROP = ()
    DROPP = ()
    K1XPF = 0
    K1EPF = 0
    RAMP = 0
    OPX = 0
    NOSEL = 1
    K1LF = ''
    PFL = ''
    NFL = ''
    OFL = ''
    K1S1 = 0
    IDB = 0
    EFL = ''
    XFL = ''
    K1SC = ''
    MORD = 1
    GAL = 1
    EAL = 4
    HZ = 0
    PT = 0
    PM = 15
    PRIO = 0
    M16 = 0
    MFIRST = 1
    ED = 3
    XD = 2
    TL = 0
    STAG = 0
    STAGD = 0
    ENTW = 4
    DBG = 0
    K1DELAY = 0
    EXTRAK = 0
    AMP = None
    EXTRAK2 = 0
    EXPF = 0
    EB = (0, 4, 8, 11, 16)
    RB = (0, 3, 6, 9, 11, 16)
    RB1 = (0, 3, 6, 9, 11, 16)
    XPF = 0
    EPF = 4
    LATE = 1
    NOE = False
    NOX = False
    ALIGN = 1
    BENCH = 0
    NOVM = False
    NOADD = False
    NOLDS = False
    NOCOMP = False
    PERM = 0
    PSC = ''

NE, NN = 800000, 12500
CH, NP, NB = 3200, 250, 256
SEGSTR = 16384
WS_ENT = 0
WS_OFF = 0x400000
WS_WF = 0x440000
WS_STAMP = 0x480000
WS_SIZE = 0x800000

class Asm:
    def __init__(self): self.l = []
    def __call__(self, s):
        if isinstance(s, (list, tuple)):
            for x in s: self(x)
            return
        for line in s.strip("\n").split("\n"):
            line = line.strip()
            if not line: continue
            if line.endswith(":"): self.l.append(line)
            else: self.l.append("    " + line)
    def text(self): return "\n".join(self.l) + "\n"

def srd(a, d, lo, hi, nrec):
    a(f"""s_mov_b32 s{d}, s{lo}
    s_and_b32 s{d+1}, s{hi}, 0xffff
    s_mov_b32 s{d+2}, {nrec}
    s_mov_b32 s{d+3}, 0x00020000""")

def scan(a, v):
    for sh in (1, 2, 4, 8):
        a("s_nop 1")
        a(f"v_add_u32_dpp v{v}, v{v}, v{v} row_shr:{sh} row_mask:0xf bank_mask:0xf bound_ctrl:0")
    a("s_nop 1")
    a(f"v_add_u32_dpp v{v}, v{v}, v{v} row_bcast:15 row_mask:0xa bank_mask:0xf")
    a("s_nop 1")
    a(f"v_add_u32_dpp v{v}, v{v}, v{v} row_bcast:31 row_mask:0xc bank_mask:0xf")

def kd(name, nv, ns=102):
    return f""".p2align 6
.amdhsa_kernel {name}
  .amdhsa_next_free_vgpr {nv}
  .amdhsa_next_free_sgpr {ns}
  .amdhsa_accum_offset {(nv+3)//4*4}
  .amdhsa_group_segment_fixed_size 0
  .amdhsa_kernarg_size 80
  .amdhsa_user_sgpr_count 2
  .amdhsa_user_sgpr_kernarg_segment_ptr 1
  .amdhsa_system_sgpr_workgroup_id_x 1
.end_amdhsa_kernel
"""

K1_BLOCK = 832
K1_LDS = 2048 + SEGSTR
def gen_k1():
    a = Asm()
    a(f"""
    .globl bin_kernel
    .p2align 8
    .type bin_kernel,@function
bin_kernel:
    s_cmp_ge_u32 s2, {NP}
    s_cbranch_scc1 L_k1_w
    ;K1S 0
    s_load_dwordx4 s[4:7], s[0:1], 16
    s_load_dwordx2 s[8:9], s[0:1], 72
    v_lshlrev_b32 v3, 4, v0
    s_mul_i32 s3, s2, {CH*4}
    v_cmp_gt_u32 vcc, {CH//4}, v0
    v_and_b32 v1, 255, v0
    v_lshlrev_b32 v1, 2, v1
    v_mov_b32 v2, 0
    ds_write_b32 v1, v2
    v_mov_b32 v44, -1
    v_mov_b32 v45, -1
    v_mov_b32 v46, -1
    v_mov_b32 v47, -1
    ds_write_b128 v3, v[44:47] offset:2048
    v_lshlrev_b32 v2, 2, v1
    ds_write_b128 v2, v[44:47] offset:{2048 + 768*16}
    v_readfirstlane_b32 s28, v0
    s_mov_b32 s34, 0x7c
    s_mov_b32 s14, {NE*4}
    s_mov_b32 s15, 0x00020000
    s_mov_b32 s18, {NE*4}
    s_mov_b32 s19, 0x00020000
    s_waitcnt lgkmcnt(0)
    s_mov_b32 s16, s6
    s_and_b32 s17, s7, 0xffff
    s_mov_b32 s12, s4
    s_and_b32 s13, s5, 0xffff
    s_and_saveexec_b64 s[24:25], vcc
    buffer_load_dwordx4 v[4:7], v3, s[16:19], s3 offen{Cfg.K1LF}
    buffer_load_dwordx4 v[8:11], v3, s[12:15], s3 offen{Cfg.K1LF}
    """)
    srd(a, 20, 8, 9, WS_SIZE)
    a(f"""
    s_barrier
    v_lshlrev_b32 v12, 2, v0
    v_mov_b32 v13, 1
    s_waitcnt vmcnt(1)
    ;K1S 1
    """)
    for j in range(4):
        a(f"""v_and_b32 v{14+j}, 7, v{4+j}
        v_lshlrev_b32 v{14+j}, 7, v{14+j}
        v_lshrrev_b32 v{18+j}, 1, v{4+j}
        v_and_or_b32 v{14+j}, v{18+j}, s34, v{14+j}
        ds_add_rtn_u32 v{18+j}, v{14+j}, v13""")
    for j in range(4):
        a(f"""v_lshrrev_b32 v{4+j}, 8, v{4+j}
        v_lshl_or_b32 v{4+j}, v{4+j}, 26, v12""")
    a("s_waitcnt vmcnt(0)")
    for j in range(4):
        a(f"v_lshl_or_b32 v{8+j}, v{8+j}, 12, {j}")
        a(f"v_or_b32 v{4+j}, v{4+j}, v{8+j}")
    a(f"""
    s_waitcnt lgkmcnt(0)
    s_barrier
    s_mov_b64 s[26:27], exec
    s_mov_b64 exec, -1
    {"s_cmp_ge_u32 s28, 64" if Cfg.K1S1 else ""}
    {"s_cbranch_scc1 L_k1_nooff" if Cfg.K1S1 else ""}
    v_and_b32 v22, 63, v0
    v_lshlrev_b32 v23, 4, v22
    ds_read_b128 v[24:27], v23
    s_waitcnt lgkmcnt(0)
    """)
    for j in range(4):
        a(f"""v_add_u32 v{24+j}, 3, v{24+j}
        v_lshrrev_b32 v{24+j}, 2, v{24+j}""")
    a(f"""
    v_add_u32 v28, v24, v25
    v_add_u32 v29, v28, v26
    v_add_u32 v30, v29, v27
    v_mov_b32 v31, v30
    """)
    scan(a, 31)
    a(f"""
    v_sub_u32 v32, v31, v30
    v_add_u32 v33, v32, v24
    v_add_u32 v34, v32, v28
    v_add_u32 v35, v32, v29
    v_readlane_b32 s33, v31, 63
    ds_write_b128 v23, v[32:35] offset:1024
    {"ds_write_b32 v23, v31" if Cfg.K1S1 else ""}
    s_cmp_ge_u32 s28, 64
    s_cbranch_scc1 L_k1_nooff
    v_lshl_or_b32 v36, v24, 16, v32
    v_lshl_or_b32 v37, v25, 16, v33
    v_lshl_or_b32 v38, v26, 16, v34
    v_lshl_or_b32 v39, v27, 16, v35
    s_lshl_b32 s32, s2, 10
    s_add_u32 s32, s32, {WS_OFF}
    buffer_store_dwordx4 v[36:39], v23, s[20:23], s32 offen{Cfg.K1SC}
L_k1_nooff:
    s_waitcnt lgkmcnt(0)
    """)
    if Cfg.K1S1:
        a("""s_barrier
        v_mov_b32 v22, 1008
        ds_read_b32 v22, v22""")
    a("s_mov_b64 exec, s[26:27]")
    for j in range(4):
        a(f"ds_read_b32 v{40+j}, v{14+j} offset:1024")
    for j in range(4):
        a(f"v_lshlrev_b32 v{18+j}, 2, v{18+j}")
    for j in range(4):
        a(f"""s_waitcnt lgkmcnt({3-j})
        v_lshl_add_u32 v{40+j}, v{40+j}, 4, v{18+j}""")
    for j in range(4):
        a(f"ds_write_b32 v{40+j}, v{4+j} offset:2048")
    a(f"""
    s_mov_b64 exec, -1
    s_lshl_b32 s3, s2, 14
    v_add_u32 v2, {K1_BLOCK}, v0
    s_waitcnt lgkmcnt(0)
    {"v_readfirstlane_b32 s33, v22" if Cfg.K1S1 else ""}
    s_barrier
    ds_read_b128 v[44:47], v3 offset:2048
    ds_read_b128 v[36:39], v3 offset:{2048 + K1_BLOCK*16}
    v_cmp_gt_u32 vcc, s33, v2
    s_add_u32 s32, s3, {K1_BLOCK*16}
    s_waitcnt lgkmcnt(1)
    buffer_store_dwordx4 v[44:47], v3, s[20:23], s3 offen{Cfg.K1SC}
    s_and_saveexec_b64 s[24:25], vcc
    s_cbranch_execz L_k1_e
    s_waitcnt lgkmcnt(0)
    buffer_store_dwordx4 v[36:39], v3, s[20:23], s32 offen{Cfg.K1SC}
L_k1_e:
    s_mov_b64 exec, -1
    ;K1S 2
    ;K1OUT
    """)
    for _ in range(Cfg.K1DELAY): a("s_sleep 36")
    a(f"""
    s_endpgm
L_k1_w:
    s_cmp_ge_u32 s2, {NP+3}
    s_cbranch_scc1 L_k1_end
    s_load_dwordx4 s[4:7], s[0:1], 32
    s_load_dwordx2 s[8:9], s[0:1], 48
    s_load_dwordx2 s[10:11], s[0:1], 72
    v_lshrrev_b32 v1, 6, v0
    s_nop 0
    v_readfirstlane_b32 s28, v1
    s_sub_u32 s3, s2, {NP}
    s_mul_i32 s3, s3, 13
    s_add_u32 s28, s28, s3
    s_cmp_ge_u32 s28, 34
    s_cbranch_scc1 L_k1_end
    s_waitcnt lgkmcnt(0)
    s_mov_b32 s12, s8
    s_mov_b32 s13, s9
    s_mov_b32 s14, {144*128}
    s_mov_b32 s33, 0x{f2u(-LOG2E):08x}
    s_cmp_ge_u32 s28, 5
    s_cselect_b32 s30, 1, 0
    s_mul_i32 s31, s30, 5
    s_sub_u32 s31, s28, s31
    s_add_u32 s31, s31, 4
    s_cmp_lt_u32 s28, 10
    s_cbranch_scc1 L_k1_wgo
    s_mov_b32 s33, 1.0
    s_sub_u32 s29, s28, 10
    s_and_b32 s31, s29, 3
    s_lshr_b32 s30, s29, 2
    s_and_b32 s30, s30, 1
    s_cmp_ge_u32 s28, 18
    s_cbranch_scc1 L_k1_w2
    s_mov_b32 s12, s6
    s_mov_b32 s13, s7
    s_mov_b32 s14, {64*128}
    s_branch L_k1_wgo
L_k1_w2:
    s_cmp_lt_u32 s28, 26
    s_cbranch_scc1 L_k1_wgo
    s_mov_b32 s12, s4
    s_mov_b32 s13, s5
    s_mov_b32 s14, {64*128}
L_k1_wgo:
    s_and_b32 s13, s13, 0xffff
    s_mov_b32 s15, 0x00020000
    """)
    srd(a, 20, 10, 11, WS_SIZE)
    a(f"""
    s_lshl_b32 s31, s31, 11
    s_lshl_b32 s30, s30, 6
    s_add_u32 s31, s31, s30
    v_and_b32 v1, 63, v0
    v_lshrrev_b32 v2, 5, v1
    v_lshlrev_b32 v2, 10, v2
    v_and_b32 v3, 31, v0
    v_lshl_add_u32 v2, v3, 1, v2
    """)
    for j in range(8):
        a(f"buffer_load_ushort v{4+j}, v2, s[12:15], s31 offen offset:{j*128}")
    a(f"""
    v_lshlrev_b32 v1, 4, v1
    s_lshl_b32 s32, s28, 10
    s_add_u32 s32, s32, {WS_WF}
    s_waitcnt vmcnt(0)
    """)
    for j in range(8):
        a(f"""v_lshlrev_b32 v{4+j}, 16, v{4+j}
        v_mul_f32 v{4+j}, s33, v{4+j}""")
    for j in range(4):
        a(f"v_cvt_pk_bf16_f32 v{12+j}, v{4+2*j}, v{5+2*j}")
    a(f"""
    buffer_store_dwordx4 v[12:15], v1, s[20:23], s32 offen
L_k1_end:
    s_endpgm
    """)
    return a.text()

L_CNT, L_ST4, L_TM, L_FLAG = 0, 256, 512, 1280
L_TDT = 2048
L_GUARD = 2048 + 1024
LISTN = 3584
LISTA = 4352
L_XL = 4352
L_EL = L_XL + LISTA * 4
PL = 50 * 256
L_XA = L_EL + LISTA * 4
L_AGG = L_XA + PL
L_RING = L_AGG + 2 * PL
AGO = L_AGG - L_XA
XQ = 1056
XSLOT = 4 * XQ
RINGW = XSLOT + 2 * 1024
L_JOB = L_RING + 8 * RINGW
K2_LDS = L_JOB + 8 * XSLOT
NLOC = 49
L_WST = L_XA
assert 34 * 1024 <= 3 * PL
assert L_XA % 256 == 0 and L_AGG + 7168 < 65536 and L_XL % 256 == 0 and L_EL % 256 == 0 and K2_LDS <= 163840
TRASH = 0
assert LISTA * 4 + 3072 <= 8 * RINGW

V_H16, V_C4, V_XLA, V_ELA, V_TD = 1, 2, 3, 4, 5
V_CO, V_ECO, V_RA, V_RE0, V_RE = 6, 7, 8, 9, 10
V_EEN, V_XAD, V_LANE = 11, 12, 13
V_C8 = 14
V_RAC = 15
V_TMP = 16
V_S = 20
V_WG = [28, 48]; V_WV = [68, 84]
V_Z = [100, 132]; V_H = [116, 148]
V_A = 164
V_EA = 180
V_XEN = 184
V_GA = 188
V_GAN = 188
V_C8X = 240
V_EAV = 192
V_GG = 196
NPK = 5
V_E = 100; V_AD = 120; V_RK = 140; V_W = 164
V_JW = 208; V_JX = 224; V_JC = 148
V_OFFS = 244; V_CNT = 245; V_SEG = 246; V_WB = 247; V_REM = 248; V_ONE = 249; V_START = 250; V_J = 251; V_L16 = 252; V_L4 = 253; V_JUNK = 254

S_WAVE, S_R0, S_STEP, S_T, S_T0, S_CNT, S_I, S_SOX = 28, 29, 30, 31, 32, 33, 34, 35
S_ONE = 36
S_XMASK, S_FC, S_FIRST, S_MORE, S_SOE = 38, 39, 41, 42, 43
S_T1, S_T2, S_T3, S_RING = 44, 45, 46, 47
S_X, S_E, S_WS, S_OUT, S_OFFS = 12, 16, 20, 24, 48
S_EW, S_ER, S_ERING, S_FFF, S_BAD = 52, 53, 54, 55, 56
S_TD, S_XD, S_XS, S_SAFE = 40, 57, 58, 59
S_XQ = [12, 88, 92, 96]
S_EC, S_EEND = 52, 53
V_M256 = 242
S_SM = 76
S_EPF = 78
S_F2 = 79
S_EXM = 48
S_VC = 100
S_FM = 50
V_BADV = 241

PAD_X = 16383 << 7
PAD_E = 0x02000000
SOFF_BAD = 0x40000000

def mfmas(blk):
    A, E = V_A, V_EA
    out = []
    z, h = V_Z[blk], V_H[blk]
    for k in range(5):
        c = "0" if k == 0 else f"v[{z}:{z+15}]"
        w = V_WG[blk] + 4 * k
        s = A + 4 * k if k < 4 else E
        out.append(f"v_mfma_f32_32x32x16_bf16 v[{z}:{z+15}], v[{s}:{s+3}], v[{w}:{w+3}], {c}")
    for k in range(4):
        c = "0" if k == 0 else f"v[{h}:{h+15}]"
        w = V_WV[blk] + 4 * k
        out.append(f"v_mfma_f32_32x32x16_bf16 v[{h}:{h+15}], v[{A+4*k}:{A+4*k+3}], v[{w}:{w+3}], {c}")
    return out

def mfmas2(blk):
    A, E = V_A, V_EA
    z, h = V_Z[blk], V_H[blk]
    w = V_WG[blk] + 16
    out = [f"v_mfma_f32_32x32x16_bf16 v[{z}:{z+15}], v[{E}:{E+3}], v[{w}:{w+3}], 0"]
    for k in range(4):
        w = V_WG[blk] + 4 * k
        ka = kb = k
        if Cfg.OPX == 1: ka = kb = (k // 2) + 2 * blk
        if Cfg.OPX == 2: kb = (k + 1) % 4
        if Cfg.OPX == 3: ka = kb = 0
        out.append(f"v_mfma_f32_32x32x16_bf16 v[{z}:{z+15}], v[{A+4*ka}:{A+4*ka+3}], v[{w}:{w+3}], v[{z}:{z+15}]")
        c = "0" if k == 0 else f"v[{h}:{h+15}]"
        if Cfg.OPX != 2: w = V_WV[blk] + 4 * k
        out.append(f"v_mfma_f32_32x32x16_bf16 v[{h}:{h+15}], v[{A+4*kb}:{A+4*kb+3}], v[{w}:{w+3}], {c}")
    return out

def x_dma(xen):
    out = []
    so = f"s{S_BAD}" if Cfg.NOX else "0"
    for q in range(4):
        out.append([f"v_and_or_b32 v{V_XAD}, v{xen+q}, s{S_XMASK}, v{V_CO}",
                    f"buffer_load_dwordx4 v{V_XAD}, s[{S_XQ[q]}:{S_XQ[q]+3}], {so} offen offset:{q*XQ}{Cfg.XFL} lds"])
    return out

def x_m0(): return [f"s_mov_b32 m0, s{S_XS}"]
def x_toggle(): return [f"s_xor_b32 s{S_XS}, s{S_XS}, s{S_XD}"] if Cfg.XD == 3 else []
def vmw():
    return {(3, 4): 6, (3, 3): 5, (2, 3): 1, (2, 2): 0}[(Cfg.XD, Cfg.ED)]

def e_adv():
    if Cfg.ED == 2: return []
    if Cfg.ED == 3: return [f"s_xor_b32 s{S_EC}, s{S_EC}, s{S_EEND}"]
    return [f"s_add_u32 s{S_EC}, s{S_EC}, 1024",
            f"s_cmp_eq_u32 s{S_EC}, s{S_EEND}",
            f"s_cselect_b32 s{S_EC}, s{S_ERING}, s{S_EC}"]

def e_dma(een):
    nt = Cfg.EFL
    so = f"s{S_BAD}" if Cfg.NOE else "0"
    return [f"s_mov_b32 m0, s{S_EC}",
            f"v_lshl_add_u32 v{V_XAD}, v{een}, 5, v{V_ECO}",
            f"buffer_load_dwordx4 v{V_XAD}, s[{S_E}:{S_E+3}], {so} offen{nt} lds"]

def a_read(k):
    return f"ds_read_b128 v[{V_A+4*k}:{V_A+4*k+3}], v{V_RAC} offset:{32*k}"

def e_read():
    return [f"v_add_u32 v{V_RE}, s{S_EC}, v{V_RE0}",
            f"ds_read_b128 v[{V_EA}:{V_EA+3}], v{V_RE}"]

def gan(): return f"v_and_or_b32 v{V_GAN}, s{S_TD}, v{V_M256}, v{V_C8}"

def ea_read(ga):
    return f"ds_read2_b64 v[{V_EAV}:{V_EAV+3}], v{ga} offset0:0 offset1:32"


_du = [0]
def dispatch(a, chk_safe=False):
    _du[0] += 1
    n = _du[0]
    if chk_safe:
        a(f"s_cmp_eq_u32 s{S_SAFE}, 0")
        a(f"s_cbranch_scc1 L_dn{n}")
        a(f"s_bitcmp1_b32 s{S_TD}, 7")
        a("s_cbranch_scc1 L_done")
        a("s_branch L_BG")
        a(f"L_dn{n}:")
    a(f"s_and_b32 s{S_T1}, s{S_TD}, 0xff")
    a("s_cbranch_scc0 L_B0")
    a(f"s_cmp_gt_u32 s{S_T1}, 8")
    a(f"s_cbranch_scc1 L_dh{n}")
    for code, lab in ((1, "L_B1"), (2, "L_B2"), (4, "L_B3"), (8, "L_B4")):
        a(f"s_cmp_eq_u32 s{S_T1}, {code}")
        a(f"s_cbranch_scc1 {lab}")
    a("s_branch L_BG")
    a(f"L_dh{n}:")
    for code, lab in ((16, "L_B5"), (32, "L_B6"), (64, "L_B7"), (128, "L_done")):
        a(f"s_cmp_eq_u32 s{S_T1}, {code}")
        a(f"s_cbranch_scc1 {lab}")
    a("s_branch L_BG")

def gen_body(a, gb):
    gen = gb == "G"
    def stages(blk):
        z, h = V_Z[blk], V_H[blk]
        ex = [f"v_exp_f32 v{z+i}, v{z+i}" for i in range(16)]
        rc = [f"v_rcp_f32 v{z+i}, v{z+i}" for i in range(16)]
        sel = "op_sel_hi:[1,0,1]" if blk == 0 else "op_sel:[0,1,0] op_sel_hi:[1,1,1]"
        st1, st2, st3 = [], [], []
        def flush(acc, ga, extra):
            return [f"v_add_f32 v{acc}, v{acc}, v{acc+1}",
                    f"v_cvt_f64_f32 v[{V_S+2*(extra%4)}:{V_S+2*(extra%4)+1}], v{acc}",
                    f"ds_add_f64 v{ga}, v[{V_S+2*(extra%4)}:{V_S+2*(extra%4)+1}] offset:{AGO + blk*PL + (256*extra if not gen else 0)}"]
        if not gen:
            for i in range(0, 16, 2):
                ea = V_EAV + (2 if (gb and i // 2 >= gb) else 0)
                if Cfg.NOSEL and blk == 1:
                    st2.append(f"v_pk_fma_f32 v[{z+i}:{z+i+1}], v[{z+i}:{z+i+1}], v[{ea+28}:{ea+29}], s[{S_ONE}:{S_ONE+1}] op_sel_hi:[1,0,1]")
                    continue
                st2.append(f"v_pk_fma_f32 v[{z+i}:{z+i+1}], v[{z+i}:{z+i+1}], v[{ea}:{ea+1}], s[{S_ONE}:{S_ONE+1}] {sel}")
            segs = [(0, 8)] if not gb else [(0, gb), (gb, 8)]
            tails = []
            for si, (g0, g1) in enumerate(segs):
                acc = z + 2 * g0
                for i in range(2 * g0, 2 * g1, 2):
                    if i == 2 * g0:
                        st3.append(f"v_pk_mul_f32 v[{acc}:{acc+1}], v[{z+i}:{z+i+1}], v[{h+i}:{h+i+1}]")
                    else:
                        st3.append(f"v_pk_fma_f32 v[{acc}:{acc+1}], v[{z+i}:{z+i+1}], v[{h+i}:{h+i+1}], v[{acc}:{acc+1}]")
                tails.append(flush(acc, V_GA, si))
            for k in range(3):
                for t in tails: st3.append(t[k])
            nf = len(segs)
        else:
            for g in range(8):
                st1.append(f"ds_read_b32 v{V_GG+16+g}, v{V_GG+g} offset:{4*blk}")
            st1.append("s_waitcnt lgkmcnt(0)")
            for g in range(8):
                st1.append(f"v_cndmask_b32 v{V_GG+8+g}, 0, v{V_GG+16+g}, s[{S_SM}:{S_SM+1}]")
                st1.append(f"v_cndmask_b32 v{V_GG+16+g}, v{V_GG+16+g}, 1.0, s[{S_SM}:{S_SM+1}]")
            for i in range(16):
                st1.append(f"v_add_f32 v{z+i}, v{z+i}, v{V_GG+8+i//2}")
                st2.append(f"v_fma_f32 v{z+i}, v{z+i}, v{V_GG+16+i//2}, 1.0")
            for g in range(8):
                acc = z + 2 * g
                st3.append(f"v_pk_mul_f32 v[{acc}:{acc+1}], v[{acc}:{acc+1}], v[{h+2*g}:{h+2*g+1}]")
                st3 += flush(acc, V_GG + g, g)
            nf = 8
        return st1, ex, st2, rc, st3, nf

    inc = 0 if Cfg.BENCH else 1024
    a(".p2align 6")
    a(f"L_B{gb}:")
    if Cfg.TL:
        a("s_memrealtime s[72:73]")
        a("s_waitcnt lgkmcnt(0)")
        a("s_sub_u32 s72, s72, s62")
        a(f"s_mov_b32 m0, s{S_I}")
        a("s_nop 0")
        a("v_writelane_b32 v243, s72, m0")
    if Cfg.PT == 1: a("s_setprio 1")
    if Cfg.PT == 2: a("s_setprio 0")
    st1, ex, st2, rc, st3, nf = stages(0)
    mf = mfmas2(1) if Cfg.MORD else mfmas(1)
    if Cfg.HZ == 4: a("s_nop 15"); a("s_nop 15")
    if gen:
        a(f"v_mov_b32 v{V_GG}, v{V_GAN}")
        for g in range(1, 8):
            a(f"s_bitcmp1_b32 s{S_TD}, {g-1}")
            a(f"s_cselect_b32 s{S_T1}, 256, 0")
            a(f"v_add_u32 v{V_GG+g}, s{S_T1}, v{V_GG+g-1}")
    a(st1)
    if Cfg.BENCH:
        rl = [f"s_cmp_ge_u32 s{S_I}, {Cfg.BENCH}", f"s_cselect_b32 s{S_TD}, 0x80, s{S_TD}"]
    else:
        rl = [f"v_readlane_b32 s{S_TD}, v{V_TD}, s{S_I}"]
    fill = [f"s_add_u32 s{S_I}, s{S_I}, 1",
            f"ds_read_b128 v[{V_XEN}:{V_XEN+3}], v{V_XLA}",
            f"ds_read_b32 v{V_EEN}, v{V_ELA}"] + x_toggle() + e_adv() + [rl]
    eb = Cfg.EB
    for i in range(4):
        a(mf[i])
        for e in ex[eb[i]:eb[i+1]]:
            a(e)
            if fill: a(fill.pop(0))
    a("s_waitcnt lgkmcnt(2)")
    if (Cfg.PT == 3 and Cfg.PM >> 0 & 1): a("s_setprio 1")
    a(st2)
    if (Cfg.PT == 3 and Cfg.PM >> 0 & 1): a("s_setprio 0")
    a(mf[4]); a(rc[0])
    if Cfg.XD == 3: a(f"v_add_u32 v{V_RAC}, s{S_XS}, v{V_RA}")
    a(rc[1])
    a(e_read()[0])
    a(rc[2])
    a(f"s_waitcnt vmcnt({vmw()})")
    a(e_read()[1])
    rb = Cfg.RB
    a(rc[3:rb[1]])
    last_use = {0: 2, 1: 4, 2: 6, 3: 8} if Cfg.MORD else {0: 5, 1: 6, 2: 7, 3: 8}
    done = set()
    def reads_after(n):
        for k in range(4):
            if k not in done and last_use[k] < n:
                a(a_read(k)); done.add(k)
    reads_after(4)
    for i in range(1, 5):
        a(mf[4+i])
        reads_after(4 + i)
        a(rc[rb[i]:rb[i+1]])
        if i == 3 and Cfg.NOSEL and not gen:
            a(f"v_mov_b32 v{V_EAV+28}, v{V_EAV+1}")
            if gb: a(f"v_mov_b32 v{V_EAV+30}, v{V_EAV+3}")
    a("s_setprio 1" if (Cfg.PT == 3 and Cfg.PM >> 1 & 1) else "s_nop 0")
    a(st3[0])
    reads_after(9)
    a(st3[1:])
    if (Cfg.PT == 3 and Cfg.PM >> 1 & 1): a("s_setprio 0")
    if Cfg.PT == 1: a("s_setprio 0")
    if Cfg.PT == 2: a("s_setprio 1")
    st1, ex, st2, rc, st3, nf1 = stages(1)
    mf = mfmas2(0) if Cfg.MORD else mfmas(0)
    if Cfg.HZ == 3: a("s_nop 15"); a("s_nop 15")
    a(st1)
    xd = x_dma(V_XEN)
    for i in range(4):
        if not Cfg.MORD: a(f"s_waitcnt lgkmcnt({3-i+nf})")
        elif i == 0: a(f"s_waitcnt lgkmcnt({2+nf})")
        elif i == 3: a(f"s_waitcnt lgkmcnt({nf})")
        a(mf[i]); a(ex[eb[i]:eb[i+1]])
    a(x_m0())
    a(xd[0])
    if (Cfg.PT == 3 and Cfg.PM >> 2 & 1): a("s_setprio 1")
    a(st2)
    if (Cfg.PT == 3 and Cfg.PM >> 2 & 1): a("s_setprio 0")
    rb = Cfg.RB1
    a(mf[4])
    a(rc[rb[0]:rb[1]])
    for i in range(1, 4):
        a(mf[4+i])
        a(xd[i]); a(rc[rb[i]:rb[i+1]])
        if i == 2: a(f"v_add_u32 v{V_XLA}, {inc}, v{V_XLA}")
        if i == 3: a(f"v_add_u32 v{V_ELA}, {inc}, v{V_ELA}")
    a(mf[8]); a(e_dma(V_EEN)); a(rc[rb[4]:rb[5]])
    a("s_setprio 1" if (Cfg.PT == 3 and Cfg.PM >> 3 & 1) else "s_nop 0")
    a(st3)
    if (Cfg.PT == 3 and Cfg.PM >> 3 & 1): a("s_setprio 0")
    a(gan())
    a(ea_read(V_GAN))
    dispatch(a, gen)

def gen_loop(a):
    if Cfg.PRIO:
        a(f"""s_cmp_lt_u32 s{S_WAVE}, 4
        s_cbranch_scc1 L_noprio
        s_setprio {Cfg.PRIO}
        L_noprio:""")
    a(";STAMP 5")
    a(";STAMPC 7")
    i0 = len(a.l)
    dispatch(a, True)
    for gb in (0, 1, 2, 3, 4, 5, 6, 7, "G"):
        gen_body(a, gb)
    a("L_done:")
    def keep(x):
        t = x.strip()
        if Cfg.NOVM and (t.startswith("buffer_load")): return False
        if Cfg.NOADD and (t.startswith("ds_add_f64") or t.startswith("v_cvt_f64") or t.startswith("v_add_f32")): return False
        if Cfg.NOLDS and t.startswith("ds_"): return False
        if t.split()[0] in Cfg.DROP: return False
        if any(t.startswith(p) for p in Cfg.DROPP): return False
        if Cfg.NOCOMP and t.split()[0] in ("v_exp_f32", "v_rcp_f32", "v_pk_add_f32", "v_pk_fma_f32", "v_pk_mul_f32", "v_mfma_f32_32x32x16_bf16"): return False
        return True
    a.l[i0:] = [x for x in a.l[i0:] if keep(x)]
    if Cfg.IDB:
        out = []
        pre = []
        if Cfg.IDB & 2:
            for r in list(range(28, 44)) + list(range(48, 64)) + list(range(68, 100)):
                pre.append(f"    v_mov_b32 v{r}, 0")
            pre.append("    s_mov_b64 exec, 0x10001")
            for r in (28, 33, 48, 53, 68, 73, 84, 89):
                pre.append(f"    v_mov_b32 v{r}, 0x3f80")
            pre.append("    s_mov_b64 exec, -1")
        for x in a.l[i0:]:
            t = x.strip()
            if t.startswith("v_mfma") and (", v[172:175]," in t or ", v[176:179]," in t): continue
            out.append(x)
            if Cfg.IDB & 4:
                if t.startswith("buffer_load_dwordx4") and "offset:" in t: out.append(x)
                if t.startswith("ds_read_b128 v[1") and "v15 " in t:
                    out.append(x.replace("v[164:167]", "v[208:211]").replace("v[168:171]", "v[212:215]").replace("v[172:175]", "v[216:219]").replace("v[176:179]", "v[220:223]"))
        a.l[i0:] = pre + out
    if Cfg.M16:
        import re
        out = []
        cnt = 0
        for x in a.l[i0:]:
            m = re.match(r"\s*v_mfma_f32_32x32x16_bf16 v\[(\d+):\d+\], (v\[\d+:\d+\]), (v\[\d+:\d+\]), (.*)", x)
            if m:
                d = int(m.group(1)); cnt += 1
                for t in range(2):
                    dd = d + 4 * ((2 * cnt + t) % 4)
                    c = "0" if m.group(4) == "0" else f"v[{dd}:{dd+3}]"
                    out.append(f"    v_mfma_f32_16x16x32_bf16 v[{dd}:{dd+3}], {m.group(2)}, {m.group(3)}, {c}")
            else: out.append(x)
        a.l[i0:] = out

def gen_k2():
    assert Cfg.XD == 2 and Cfg.ED in (2, 3)
    a = Asm()
    WDMA_WAIT = 4 + (1 if Cfg.XPF else 0)
    a(f"""
    .globl main_kernel
    .p2align 8
    .type main_kernel,@function
main_kernel:
    s_cmp_ge_u32 s2, {NB}
    s_cbranch_scc1 L_k2_end
    ;STAMP 0
    s_load_dwordx2 s[10:11], s[0:1], 72
    s_load_dwordx4 s[4:7], s[0:1], 0
    s_load_dwordx2 s[8:9], s[0:1], 56
    v_lshrrev_b32 v{V_TMP}, 6, v0
    v_and_b32 v{V_LANE}, 63, v0
    v_readfirstlane_b32 s{S_WAVE}, v{V_TMP}
    v_lshrrev_b32 v{V_WB}, 1, v0
    v_lshlrev_b32 v{V_TMP}, 10, v{V_WB}
    s_and_b32 s{S_T1}, s2, 7
    s_lshl_b32 s{S_T1}, s{S_T1}, 5
    s_lshr_b32 s{S_T2}, s2, 3
    s_add_u32 s{S_T1}, s{S_T1}, s{S_T2}
    s_lshl_b32 s{S_T1}, s{S_T1}, 2
    s_mov_b32 s{S_OFFS+2}, {NP*1024}
    s_mov_b32 s{S_OFFS+3}, 0x00020000
    v_and_b32 v{V_J}, 1, v0
    v_lshlrev_b32 v{V_ECO}, 4, v{V_J}
    v_lshl_add_u32 v{V_SEG}, v{V_WB}, 14, v{V_ECO}
    v_lshrrev_b32 v{V_H16}, 5, v{V_LANE}
    v_lshlrev_b32 v{V_H16}, 4, v{V_H16}
    v_and_b32 v{V_C4}, 31, v0
    v_lshlrev_b32 v{V_C4}, 2, v{V_C4}
    v_lshlrev_b32 v{V_C8}, 1, v{V_C4}
    v_lshlrev_b32 v{V_L16}, 4, v{V_LANE}
    v_lshlrev_b32 v{V_L4}, 2, v{V_LANE}
    s_waitcnt lgkmcnt(0)
    s_add_u32 s{S_OFFS}, s10, {WS_OFF}
    s_addc_u32 s{S_OFFS+1}, s11, 0
    s_and_b32 s{S_OFFS+1}, s{S_OFFS+1}, 0xffff
    buffer_load_dword v{V_OFFS}, v{V_TMP}, s[{S_OFFS}:{S_OFFS+3}], s{S_T1} offen
    """)
    srd(a, S_WS, 10, 11, WS_SIZE)
    srd(a, S_X, 4, 5, NN * 128)
    srd(a, S_E, 6, 7, NE * 32)
    srd(a, S_OUT, 8, 9, NN * 128)
    a(f"""
    v_mov_b32 v{V_ONE}, 1
    s_mov_b32 s{S_ONE}, 1.0
    s_mov_b32 s{S_ONE+1}, 1.0
    s_mov_b32 s{S_XMASK}, {PAD_X}
    s_mov_b32 s{S_FC}, 0xfc
    s_mov_b32 s{S_FFF}, 0xfff
    s_mov_b32 s{S_BAD}, {SOFF_BAD}
    s_mov_b32 s{S_R0}, 0
    s_mov_b32 s{S_EPF}, {Cfg.EPF << 26}
    v_mov_b32 v{V_BADV}, 0x40000000
    s_mov_b32 s{S_STEP}, {2*NPK}
    s_mov_b32 s{S_FIRST}, 1
    s_mov_b32 s{S_F2}, 1
    s_mul_i32 s{S_RING}, s{S_WAVE}, {RINGW}
    s_add_u32 s{S_RING}, s{S_RING}, {L_RING}
    s_add_u32 s{S_ERING}, s{S_RING}, {XSLOT}
    s_add_u32 s{S_EEND}, s{S_ERING}, {3072 if Cfg.ED == 4 else 1024}
    {"s_xor_b32 s%d, s%d, s%d" % (S_EEND, S_EEND, S_ERING) if Cfg.ED == 3 else ""}
    s_mul_i32 s{S_XD}, s{S_WAVE}, {XSLOT}
    s_add_u32 s{S_XD}, s{S_XD}, {L_JOB}
    v_mov_b32 v{V_M256}, 0xffffff00
    {'v_mov_b32 v243, 0' if Cfg.TL else ''}
    """)
    for q in range(1, 4):
        d = S_XQ[q]
        a(f"""s_sub_u32 s{d}, s4, {q*XQ}
        s_subb_u32 s{d+1}, s5, 0
        s_and_b32 s{d+1}, s{d+1}, 0xffff
        s_mov_b32 s{d+2}, {NN*128 + q*XQ}
        s_mov_b32 s{d+3}, 0x00020000""")
    a(f"""
    v_and_b32 v{V_CO}, 7, v0
    v_lshlrev_b32 v{V_CO}, 4, v{V_CO}
    v_xor_b32 v{V_CO}, v{V_CO}, v{V_H16}
    v_and_b32 v{V_TMP+2}, 25, v0
    v_bfe_u32 v{V_TMP}, v0, 1, 1
    v_lshl_or_b32 v{V_TMP+2}, v{V_TMP}, 2, v{V_TMP+2}
    v_bfe_u32 v{V_TMP}, v0, 2, 1
    v_lshl_or_b32 v{V_TMP+2}, v{V_TMP}, 1, v{V_TMP+2}
    v_lshl_add_u32 v{V_RE0}, v{V_TMP+2}, 5, v{V_H16}
    v_and_b32 v{V_TMP}, 3, v{V_TMP+2}
    v_mul_u32_u24 v{V_TMP}, {XQ}, v{V_TMP}
    v_lshrrev_b32 v{V_TMP+1}, 2, v{V_TMP+2}
    v_lshl_add_u32 v{V_TMP}, v{V_TMP+1}, 7, v{V_TMP}
    v_and_b32 v{V_TMP+1}, 16, v0
    v_xor_b32 v{V_TMP+1}, v{V_TMP+1}, v{V_H16}
    v_add_u32 v{V_RA}, v{V_TMP}, v{V_TMP+1}
    v_mov_b32 v{V_TMP}, 0
    v_mov_b32 v{V_TMP+1}, {L_GUARD}
    ds_write_b32 v{V_TMP+1}, v{V_TMP}
    v_mul_u32_u24 v{V_WB}, {CH}, v{V_WB}
L_k2_init:
    v_mov_b32 v{V_RK}, 0
    v_lshlrev_b32 v{V_TMP+2}, 2, v0
    ds_write_b32 v{V_TMP+2}, v{V_RK}
    v_mov_b32 v{V_AD}, {PAD_X}
    v_mov_b32 v{V_AD+1}, {PAD_X}
    v_mov_b32 v{V_AD+2}, {PAD_X}
    v_mov_b32 v{V_AD+3}, {PAD_X}
    v_mov_b32 v{V_AD+4}, {PAD_E}
    v_mov_b32 v{V_AD+5}, {PAD_E}
    v_mov_b32 v{V_AD+6}, {PAD_E}
    v_mov_b32 v{V_AD+7}, {PAD_E}
    v_lshlrev_b32 v{V_TMP+2}, 4, v0
    ds_write_b128 v{V_TMP+2}, v[{V_AD}:{V_AD+3}] offset:{L_XL}
    ds_write_b128 v{V_TMP+2}, v[{V_AD}:{V_AD+3}] offset:{L_XL+8192}
    ds_write_b128 v{V_TMP+2}, v[{V_AD}:{V_AD+3}] offset:{L_XL+LISTA*4-8192}
    ds_write_b128 v{V_TMP+2}, v[{V_AD+4}:{V_AD+7}] offset:{L_EL}
    ds_write_b128 v{V_TMP+2}, v[{V_AD+4}:{V_AD+7}] offset:{L_EL+8192}
    ds_write_b128 v{V_TMP+2}, v[{V_AD+4}:{V_AD+7}] offset:{L_EL+LISTA*4-8192}
    s_waitcnt lgkmcnt(0)
    s_barrier
    s_cmp_eq_u32 s{S_FIRST}, 0
    s_cbranch_scc1 L_k2_round
    s_waitcnt vmcnt(0)
    v_and_b32 v{V_TMP}, 0xffff, v{V_OFFS}
    v_lshrrev_b32 v{V_CNT}, 16, v{V_OFFS}
    v_lshl_add_u32 v{V_SEG}, v{V_TMP}, 4, v{V_SEG}
L_k2_round:
    ;STAMP 1
    s_add_u32 s{S_T1}, s{S_R0}, s{S_STEP}
    v_min_u32 v{V_REM}, s{S_T1}, v{V_CNT}
    v_subrev_u32 v{V_REM}, s{S_R0}, v{V_REM}
    v_sub_u32 v{V_REM}, v{V_REM}, v{V_J}
    s_lshl_b32 s{S_T2}, s{S_R0}, 4
    """)
    for k in range(NPK):
        a(f"""v_cmpx_lt_i32 vcc, {2*k}, v{V_REM}
        s_cbranch_execz L_k2_ld_done
        buffer_load_dwordx4 v[{V_E+4*k}:{V_E+4*k+3}], v{V_SEG}, s[{S_WS}:{S_WS+3}], s{S_T2} offen offset:{32*k}{Cfg.NFL}""")
    a(f"""
L_k2_ld_done:
    s_mov_b64 exec, -1
    s_cmp_eq_u32 s{S_FIRST}, 0
    s_cbranch_scc1 L_k2_now
    s_mov_b32 s{S_FIRST}, 0
    """)
    a(f"""
    s_lshl_b32 s{S_T0}, s{S_WAVE}, 10
    s_add_u32 s{S_T2}, s{S_T0}, {WS_WF}
    s_add_u32 s{S_T0}, s{S_T0}, {L_WST}
    """)
    for k in range(5):
        if k == 4:
            a(f"""s_cmp_ge_u32 s{S_WAVE}, 2
            s_cbranch_scc1 L_k2_now0""")
        a(f"""s_add_u32 m0, s{S_T0}, {8192*k}
        s_add_u32 s{S_T3}, s{S_T2}, {8192*k}
        buffer_load_dwordx4 v{V_L16}, s[{S_WS}:{S_WS+3}], s{S_T3} offen lds""")
    a(f"""
L_k2_now0:
    """)
    a(f"""
    s_lshr_b32 s{S_T2}, s{S_WAVE}, 2
    s_lshl_b32 s{S_T2}, s{S_T2}, 13
    s_add_u32 s{S_T2}, s{S_T2}, s2
    v_lshrrev_b32 v{V_TMP}, 4, v{V_LANE}
    v_lshl_add_u32 v{V_TMP}, v{V_TMP}, 11, s{S_T2}
    v_bfe_u32 v{V_TMP+1}, v0, 3, 1
    v_lshl_add_u32 v{V_TMP}, v{V_TMP+1}, 9, v{V_TMP}
    v_lshlrev_b32 v{V_JX}, 7, v{V_TMP}
    v_add_u32 v{V_JX+1}, {256*128}, v{V_JX}
    v_add_u32 v{V_JX+2}, {1024*128}, v{V_JX}
    v_add_u32 v{V_JX+3}, {1280*128}, v{V_JX}
    """)
    nox = Cfg.NOX; Cfg.NOX = False
    a(f"s_mov_b32 m0, s{S_XD}"); a(x_dma(V_JX))
    Cfg.NOX = nox
    a(f"""
    ;STAMP 2
    s_waitcnt vmcnt(4)
    s_branch L_k2_cnt
L_k2_now:
    s_waitcnt vmcnt(0)
L_k2_cnt:
    ;STAMP 3
    ;STAMPB 0
    v_cmpx_lt_u32 vcc, s{S_T1}, v{V_CNT}
    v_mov_b32 v{V_TMP}, {L_FLAG}
    ds_write_b32 v{V_TMP}, v{V_ONE}
    s_mov_b64 exec, -1
    """)
    for k in range(NPK):
        a(f"v_cmpx_lt_i32 vcc, {2*k}, v{V_REM}")
        a("s_cbranch_execz L_k2_cnt_done")
        for m in range(4):
            sl = 4 * k + m
            a(f"v_and_b32_sdwa v{V_AD+sl}, v{V_E+sl}, s{S_FC} dst_sel:DWORD dst_unused:UNUSED_PAD src0_sel:BYTE_3 src1_sel:DWORD")
            a(f"ds_add_rtn_u32 v{V_RK+sl}, v{V_AD+sl}, v{V_ONE} offset:{L_CNT}")
        for m in range(4):
            sl = 4 * k + m
            a(f"v_lshrrev_b32 v{V_W+2*sl}, 5, v{V_E+sl}")
            a(f"v_and_b32 v{V_W+2*sl+1}, s{S_FFF}, v{V_E+sl}")
            a(f"v_add_u32 v{V_W+2*sl+1}, v{V_W+2*sl+1}, v{V_WB}")
        if Cfg.EPF:
            for m in range(4):
                a(f"v_cmp_gt_u32 s[{80+2*m}:{81+2*m}], s{S_EPF}, v{V_E+4*k+m}")
            for m in range(4):
                a(f"v_lshlrev_b32 v{V_TMP+m}, 5, v{V_W+2*(4*k+m)+1}")
            for m in range(4):
                a(f"v_cndmask_b32 v{V_TMP+m}, v{V_BADV}, v{V_TMP+m}, s[{80+2*m}:{81+2*m}]")
                a(f"buffer_load_dword v{V_JUNK}, v{V_TMP+m}, s[{S_E}:{S_E+3}], 0 offen{Cfg.PFL}")
            if Cfg.EXPF:
                for m in range(4):
                    a(f"v_and_b32 v{V_TMP+m}, s{S_XMASK}, v{V_W+2*(4*k+m)}")
                for m in range(4):
                    a(f"v_cndmask_b32 v{V_TMP+m}, v{V_BADV}, v{V_TMP+m}, s[{80+2*m}:{81+2*m}]")
                    a(f"buffer_load_dword v{V_JUNK}, v{V_TMP+m}, s[{S_X}:{S_X+3}], 0 offen")
    a(f"""
L_k2_cnt_done:
    ;STAMPB 1
    s_mov_b64 exec, -1
    v_mov_b32 v{V_TMP+2}, {L_FLAG}
    v_cmp_gt_u32 vcc, {NLOC}, v{V_LANE}
    s_waitcnt lgkmcnt(0)
    ;STAMPB 2
    s_barrier
    ;STAMPB 3
    ds_read_b32 v{V_TMP}, v{V_L4} offset:{L_CNT}
    ds_read_b32 v{V_TMP+2}, v{V_TMP+2}
    s_waitcnt lgkmcnt(0)
    v_readfirstlane_b32 s{S_MORE}, v{V_TMP+2}
    v_add_u32 v{V_TMP}, 3, v{V_TMP}
    v_and_b32 v{V_TMP}, -4, v{V_TMP}
    v_max_u32 v{V_TMP}, 4, v{V_TMP}
    v_cndmask_b32 v{V_TMP}, 0, v{V_TMP}, vcc
    v_mov_b32 v{V_TMP+1}, v{V_TMP}
    """)
    scan(a, V_TMP + 1)
    a(f"""
    s_nop 1
    v_readlane_b32 s{S_T}, v{V_TMP+1}, 63
    v_sub_u32 v{V_START}, v{V_TMP+1}, v{V_TMP}
    s_cmp_le_u32 s{S_T}, {LISTN}
    s_cbranch_scc1 L_k2_fits
    s_mov_b32 s{S_STEP}, 2
    s_barrier
    s_branch L_k2_init
L_k2_fits:
    ;STAMPB 4
    v_mov_b32 v{V_TMP+1}, {L_RING + TRASH - L_XL}
    v_lshlrev_b32 v{V_TMP}, 2, v{V_START}
    v_cndmask_b32 v{V_TMP}, v{V_TMP+1}, v{V_TMP}, vcc
    ds_write_b32 v{V_L4}, v{V_TMP} offset:{L_ST4}
    v_lshrrev_b32 v{V_TMP}, 5, v{V_START}
    v_lshlrev_b32 v{V_TMP}, 2, v{V_TMP}
    v_bfe_u32 v{V_TMP+1}, v{V_START}, 2, 3
    v_lshlrev_b32 v{V_TMP+1}, v{V_TMP+1}, v{V_ONE}
    s_mov_b64 exec, vcc
    ds_or_b32 v{V_TMP}, v{V_TMP+1} offset:{L_TM}
    s_mov_b64 exec, -1
    v_cndmask_b32 v{V_START}, -1, v{V_START}, vcc
    s_add_u32 s{S_T}, s{S_T}, 31
    s_lshr_b32 s{S_T}, s{S_T}, 5
    s_add_u32 s{S_CNT}, s{S_T}, 7
    s_sub_u32 s{S_CNT}, s{S_CNT}, s{S_WAVE}
    s_lshr_b32 s{S_CNT}, s{S_CNT}, 3
    v_lshlrev_b32 v{V_TMP}, 1, v{V_L4}
    s_waitcnt lgkmcnt(0)
    ds_read_b64 v[{V_S}:{V_S+1}], v{V_TMP} offset:{L_TM}
    """)
    for k in range(NPK):
        a(f"v_cmpx_lt_i32 vcc, {2*k}, v{V_REM}")
        a("s_cbranch_execz L_k2_rd_done")
        if k >= 3: a("s_waitcnt lgkmcnt(8)")
        for m in range(4):
            sl = 4 * k + m
            a(f"ds_read_b32 v{V_AD+sl}, v{V_AD+sl} offset:{L_ST4}")
    a(f"""
L_k2_rd_done:
    s_mov_b64 exec, -1
    s_waitcnt lgkmcnt(0)
    ;STAMPB 5
    v_bcnt_u32_b32 v{V_S+2}, v{V_S}, 0
    v_bcnt_u32_b32 v{V_S+3}, v{V_S+1}, v{V_S+2}
    v_mov_b32 v{V_TMP+3}, v{V_S+3}
    """)
    for k in range(NPK):
        a(f"v_cmpx_lt_i32 vcc, {2*k}, v{V_REM}")
        a("s_cbranch_execz L_k2_pl_done")
        for m in range(4):
            sl = 4 * k + m
            a(f"v_lshl_add_u32 v{V_AD+sl}, v{V_RK+sl}, 2, v{V_AD+sl}")
            a(f"ds_write2st64_b32 v{V_AD+sl}, v{V_W+2*sl}, v{V_W+2*sl+1} offset0:{L_XL//256} offset1:{L_EL//256}")
    a(f"""
L_k2_pl_done:
    ;STAMPB 6
    s_mov_b64 exec, -1
    s_nop 3
    """)
    scan(a, V_TMP + 3)
    a(f"""
    v_sub_u32 v{V_TMP+3}, v{V_TMP+3}, v{V_S+3}
    v_and_b32 v{V_S+4}, 1, v{V_S}
    v_add_u32 v{V_TMP+3}, {L_XA//256 - 1}, v{V_TMP+3}
    v_add_u32 v{V_S+4}, v{V_S+4}, v{V_TMP+3}
    v_and_b32 v{V_S+5}, 1, v{V_S+1}
    v_add3_u32 v{V_S+5}, v{V_S+5}, v{V_TMP+3}, v{V_S+2}
    v_lshrrev_b32 v{V_S}, 1, v{V_S}
    v_lshrrev_b32 v{V_S+1}, 1, v{V_S+1}
    v_lshl_or_b32 v{V_S+4}, v{V_S+4}, 8, v{V_S}
    v_lshl_or_b32 v{V_S+5}, v{V_S+5}, 8, v{V_S+1}
    ds_write_b64 v{V_TMP}, v[{V_S+4}:{V_S+5}] offset:{L_TDT}
    s_lshl_b32 s{S_T1}, s{S_WAVE}, 2
    v_and_b32 v{V_TMP+1}, 15, v{V_LANE}
    v_lshl_add_u32 v{V_TMP+1}, v{V_TMP+1}, 5, s{S_T1}
    v_cmp_gt_u32 vcc, s{S_CNT}, v{V_LANE}
    s_lshl_b32 s{S_T1}, s{S_WAVE}, 7
    s_add_u32 s{S_T2}, s{S_T1}, {L_XL}
    s_add_u32 s{S_T1}, s{S_T1}, {L_EL}
    v_lshrrev_b32 v{V_XLA}, 3, v{V_LANE}
    v_lshl_add_u32 v{V_XLA}, v{V_XLA}, 4, s{S_T2}
    v_lshrrev_b32 v{V_ELA}, 1, v{V_LANE}
    v_lshl_add_u32 v{V_ELA}, v{V_ELA}, 2, s{S_T1}
    s_waitcnt lgkmcnt(0)
    ds_read_b32 v{V_TD}, v{V_TMP+1} offset:{L_TDT}
    s_mov_b32 s{S_EC}, s{S_ERING}
    s_mov_b32 s{S_I}, 0
    s_mov_b32 s{S_XS}, s{S_RING}
    s_waitcnt lgkmcnt(0)
    s_mov_b64 s[{S_VC}:{S_VC+1}], vcc
    s_barrier
    ;STAMP 4
    ;STAMPB 7
    ;STAMPC 0
    """)
    PX = V_Z[1]
    PE = V_Z[1] + 12
    def valid(sreg, t):
        a(f"s_cmp_lt_u32 {t}, s{S_CNT}")
        a(f"s_cselect_b32 s{sreg}, 0, s{S_BAD}")
    for t in range(4):
        a(f"ds_read_b32 v{PE+t}, v{V_ELA} offset:{1024*t}")
    for t in range(3):
        a(f"ds_read_b128 v[{PX+4*t}:{PX+4*t+3}], v{V_XLA} offset:{1024*t}")
    a(f"v_add_u32 v{V_XLA}, {1024*Cfg.XD}, v{V_XLA}")
    a(f"v_add_u32 v{V_ELA}, {1024*Cfg.ED}, v{V_ELA}")
    def first():
        a(f"s_mov_b32 m0, s{S_ERING}")
        a(e_dma(PE)[1:])
        a(f"s_mov_b32 m0, s{S_RING}")
        a(x_dma(PX))
    a("s_waitcnt lgkmcnt(2)")
    a(e_adv()); a(x_toggle())
    if Cfg.STAG == 2:
        a(f"""s_cmp_lt_u32 s{S_WAVE}, 4
        s_cbranch_scc1 L_k2_st1
        s_waitcnt vmcnt(0)
        s_branch L_k2_st2
        L_k2_st1:""")
    first()
    if Cfg.STAG == 2: a("L_k2_st2:")
    a(";STAMPC 1")
    def rest():
        a("s_waitcnt lgkmcnt(0)")
        if Cfg.ED >= 3: a(e_dma(PE + 1)); a(e_adv())
        if Cfg.XD == 3:
            a(x_m0()); a(x_dma(PX + 4))
            a(x_toggle())
        if Cfg.ED == 4: a(e_dma(PE + 2)); a(e_adv())
    def tdfin():
        a(f"""
        s_cmp_lg_u32 s{S_SAFE}, 0
        s_cselect_b64 s[{S_SM}:{S_SM+1}], -1, 0
        v_mov_b32 v{V_TMP}, 0x80
        v_cndmask_b32 v{V_TD}, v{V_TMP}, v{V_TD}, s[{S_VC}:{S_VC+1}]
        s_nop 0
        v_readfirstlane_b32 s{S_TD}, v{V_TD}
        s_nop 1
        """)
        a(gan())
    a(f"""
    s_cmp_eq_u32 s{S_F2}, 0
    s_cbranch_scc1 L_k2_nojob1
    s_and_b32 s{S_T2}, s{S_WAVE}, 3
    s_lshl_b32 s{S_T2}, s{S_T2}, 12
    s_add_u32 s{S_T2}, s{S_T2}, {L_WST + 18*1024}
    v_add_u32 v{V_S+6}, s{S_T2}, v{V_L16}
    v_add_u32 v{V_RAC}, s{S_XD}, v{V_RA}
    """)
    for k in range(4):
        a(f"ds_read_b128 v[{V_JW+4*k}:{V_JW+4*k+3}], v{V_S+6} offset:{1024*k}")
    for f in range(18):
        a(f"ds_read_b128 v[{28+4*f}:{31+4*f}], v{V_L16} offset:{L_WST + 1024*f}")
    a(f"""
    v_mov_b32 v{V_TMP+2}, 0x42300000
    v_mov_b32 v{V_TMP+3}, {L_GUARD}
    s_waitcnt vmcnt(5)
    ;STAMPC 2
    """)
    for k in range(4): a(a_read(k))
    for k in range(4):
        c = "0" if k == 0 else f"v[{V_JC}:{V_JC+15}]"
        a(f"s_waitcnt lgkmcnt({3-k})")
        a(f"v_mfma_f32_32x32x16_bf16 v[{V_JC}:{V_JC+15}], v[{V_A+4*k}:{V_A+4*k+3}], v[{V_JW+4*k}:{V_JW+4*k+3}], {c}")
    rest()
    a(f"""
    ;STAMPC 3
    ; dest row base: (mt*32 + 4h)*256 + c8 ; reg i adds ((i/4)*8 + i%4)*256
    s_lshr_b32 s{S_T1}, s{S_WAVE}, 2
    s_lshl_b32 s{S_T1}, s{S_T1}, 13
    s_and_b32 s{S_T2}, s{S_WAVE}, 1
    v_lshlrev_b32 v{V_S}, 6, v{V_H16}
    v_add3_u32 v{V_S}, v{V_S}, v{V_C8}, s{S_T1}
    s_mov_b32 s{S_T3}, 0x{f2u(-LOG2E):08x}
    s_nop 4
    s_bitcmp1_b32 s{S_WAVE}, 1
    s_cbranch_scc1 L_k2_jobu
    s_lshl_b32 s{S_T2}, s{S_T2}, 2
    v_add_u32 v{V_S}, s{S_T2}, v{V_S}
    v_max3_f32 v{V_TMP+1}, |v{V_JC}|, |v{V_JC+1}|, |v{V_JC+2}|
    """)
    for i in range(3, 15, 2):
        a(f"v_max3_f32 v{V_TMP+1}, |v{V_JC+i}|, |v{V_JC+i+1}|, v{V_TMP+1}")
    a(f"""
    v_max_f32 v{V_TMP+1}, |v{V_JC+15}|, v{V_TMP+1}
    v_cmpx_nle_f32 vcc, v{V_TMP+1}, v{V_TMP+2}
    ds_write_b32 v{V_TMP+3}, v{V_ONE}
    s_mov_b64 exec, -1
    """)
    for i in range(16):
        a(f"v_mul_f32 v{V_JC+i}, s{S_T3}, v{V_JC+i}")
    a("""s_waitcnt lgkmcnt(0)
    s_barrier
    ;STAMPC 4""")
    a(f"ds_read_b32 v{V_TMP+3}, v{V_TMP+3}")
    for i in range(16):
        a(f"v_exp_f32 v{V_JX+i}, v{V_JC+i}")
    a(f"""
    s_waitcnt lgkmcnt(0)
    v_cmp_ne_u32 vcc, 0, v{V_TMP+3}
    s_cmp_lt_u32 s{S_WAVE}, 4
    s_nop 0
    """)
    for i in range(16):
        if i == 8:
            a(f"""s_cbranch_scc1 L_k2_job2
            s_mov_b32 exec_hi, 0
            L_k2_job2:""")
        if i == 10:
            a(f"""s_cbranch_scc0 L_k2_job3""")
        a(f"v_cndmask_b32 v{V_JC+i}, v{V_JX+i}, v{V_JC+i}, vcc")
        a(f"ds_write_b32 v{V_S}, v{V_JC+i} offset:{L_XA + ((i//4)*8 + i%4)*256}")
    a(f"""
    s_branch L_k2_job3
L_k2_jobu:
    s_mul_i32 s{S_T2}, s{S_T2}, {PL}
    v_add_u32 v{V_S}, s{S_T2}, v{V_S}
    """)
    for i in range(16):
        a(f"v_cvt_f64_f32 v[{V_JW+2*i}:{V_JW+2*i+1}], v{V_JC+i}")
    a(f"""
    s_cmp_lt_u32 s{S_WAVE}, 4
    s_barrier
    ds_read_b32 v{V_TMP+3}, v{V_TMP+3}
    """)
    for i in range(16):
        if i == 8:
            a(f"""s_cbranch_scc1 L_k2_job4
            s_mov_b32 exec_hi, 0
            L_k2_job4:""")
        if i == 10:
            a(f"""s_cbranch_scc0 L_k2_job3""")
        a(f"ds_write_b64 v{V_S}, v[{V_JW+2*i}:{V_JW+2*i+1}] offset:{L_AGG + ((i//4)*8 + i%4)*256}")
    a(f"""
L_k2_job3:
    s_mov_b64 exec, -1
    s_waitcnt lgkmcnt(0)
    v_readfirstlane_b32 s{S_SAFE}, v{V_TMP+3}
    s_branch L_k2_nojob
L_k2_nojob1:
    """)
    rest()
    a(f"""
L_k2_nojob:
    ;STAMPC 5
    """)
    tdfin()
    a(f"v_add_u32 v{V_RAC}, s{S_XS}, v{V_RA}")
    a(f"s_waitcnt vmcnt({vmw()})")
    a(";STAMPC 6")
    a(e_read())
    for k in range(4): a(a_read(k))
    a("s_waitcnt lgkmcnt(0)")
    a(mfmas(0))
    a(f"""
    s_cmp_eq_u32 s{S_F2}, 0
    s_cbranch_scc1 L_k2_nob4
    s_mov_b32 s{S_F2}, 0
    s_barrier
L_k2_nob4:
    """)
    a(ea_read(V_GAN))
    a(x_m0()); a(x_dma(PX + 4*(Cfg.XD-1)))
    a(e_dma(PE + Cfg.ED - 1))
    a("s_waitcnt lgkmcnt(0)")
    gen_loop(a)
    a(f"""
L_k2_after:
    ;STAMP 6
    s_waitcnt vmcnt(0) lgkmcnt(0)
    s_barrier
    s_add_u32 s{S_R0}, s{S_R0}, s{S_STEP}
    s_cmp_lg_u32 s{S_MORE}, 0
    s_cbranch_scc1 L_k2_init
L_k2_epi:
    ;STAMP 7
    ;STAMPOUT
    v_cmp_gt_u32 vcc, {NLOC*8}, v0
    s_and_saveexec_b64 s[{S_T1}:{S_T1+1}], vcc
    s_cbranch_execz L_k2_end
    v_lshrrev_b32 v{V_TMP+2}, 3, v0
    v_and_b32 v{V_TMP+3}, 7, v0
    v_bfe_u32 v{V_TMP}, v0, 2, 1
    v_mul_u32_u24 v{V_TMP}, {PL}, v{V_TMP}
    v_lshl_add_u32 v{V_TMP}, v{V_TMP+2}, 8, v{V_TMP}
    v_and_b32 v{V_TMP+1}, 3, v0
    v_lshl_add_u32 v{V_TMP}, v{V_TMP+1}, 6, v{V_TMP}
    ds_read_b128 v[120:123], v{V_TMP} offset:{L_AGG}
    ds_read_b128 v[124:127], v{V_TMP} offset:{L_AGG+16}
    ds_read_b128 v[128:131], v{V_TMP} offset:{L_AGG+32}
    ds_read_b128 v[132:135], v{V_TMP} offset:{L_AGG+48}
    v_lshlrev_b32 v{V_TMP+2}, 8, v{V_TMP+2}
    v_add_u32 v{V_TMP+2}, s2, v{V_TMP+2}
    v_lshlrev_b32 v{V_TMP+2}, 7, v{V_TMP+2}
    v_lshl_add_u32 v{V_TMP+2}, v{V_TMP+3}, 4, v{V_TMP+2}
    s_mov_b32 s{S_T3}, 0x{f2u(-LOG2E):08x}
    s_waitcnt lgkmcnt(0)
    """)
    for i in range(8):
        a(f"v_cvt_f32_f64 v{100+i}, v[{120+2*i}:{121+2*i}]")
    for i in range(8):
        a(f"v_mul_f32 v{108+i}, s{S_T3}, v{100+i}")
    for i in range(8):
        a(f"v_exp_f32 v{108+i}, v{108+i}")
    for i in range(8):
        a(f"v_add_f32 v{108+i}, 1.0, v{108+i}")
    for i in range(8):
        a(f"v_rcp_f32 v{108+i}, v{108+i}")
    for i in range(8):
        a(f"v_mul_f32 v{100+i}, v{100+i}, v{108+i}")
    for i in range(4):
        a(f"v_cvt_pk_bf16_f32 v{116+i}, v{100+2*i}, v{101+2*i}")
    a(f"""
    buffer_store_dwordx4 v[116:119], v{V_TMP+2}, s[{S_OUT}:{S_OUT+3}], 0 offen{Cfg.OFL}
L_k2_end:
    s_endpgm
    """)
    return a.text()

HDR = open("standalone__edge_featured_mpnn_egc__graph.s.ref").read().split("; Override launch")[0]

def build(path):
    s = HDR
    s += f"; @launch kernel=bin_kernel grid=({NP+3},1,1) block=({K1_BLOCK},1,1) lds={K1_LDS}\n"
    for _ in range(Cfg.EXTRAK):
        s += f"; @launch kernel=bin_kernel grid=({NP+3},1,1) block=({K1_BLOCK},1,1) lds={K1_LDS}\n"
    s += f"; @launch kernel=main_kernel grid=({NB},1,1) block=(512,1,1) lds={K2_LDS}\n"
    for _ in range(Cfg.EXTRAK2):
        s += f"; @launch kernel=main_kernel grid=({NB},1,1) block=(512,1,1) lds={K2_LDS}\n"
    if Cfg.AMP:
        s += "; @launch kernel=amp_kernel grid=(1,1,1) block=(64,1,1) lds=0\n"
    s += '.amdgcn_target "amdgcn-amd-amdhsa--gfx950"\n.text\n'
    s += gen_k1() + gen_k2()
    if Cfg.AMP:
        s += f"""
    .globl amp_kernel
    .p2align 8
    .type amp_kernel,@function
amp_kernel:
    s_cmp_lg_u32 s2, 0
    s_cbranch_scc1 L_amp_end
    s_load_dwordx2 s[4:5], s[0:1], 72
    s_waitcnt lgkmcnt(0)
    s_add_u32 s4, s4, {WS_STAMP}
    s_addc_u32 s5, s5, 0
    s_load_dword s6, s[4:5], {Cfg.AMP[0]}
    s_load_dword s7, s[4:5], {Cfg.AMP[1]}
    s_memrealtime s[8:9]
    s_waitcnt lgkmcnt(0)
    s_sub_u32 s6, s7, s6
    s_lshr_b32 s6, s6, {Cfg.AMP[2] if len(Cfg.AMP) > 2 else 0}
    s_and_b32 s6, s6, 0xffff
    s_mul_i32 s6, s6, 5
L_amp:
    s_memrealtime s[10:11]
    s_waitcnt lgkmcnt(0)
    s_sub_u32 s12, s10, s8
    s_cmp_lt_u32 s12, s6
    s_cbranch_scc1 L_amp
L_amp_end:
    s_endpgm
"""
    s += '.section .rodata,"a"\n' + kd("bin_kernel", 80 if Cfg.STAMP else 48, 64 if Cfg.STAMP else 40) + kd("main_kernel", 256, 102) + (kd("amp_kernel", 8, 16) if Cfg.AMP else "")
    out = []
    for line in s.split("\n"):
        t = line.strip()
        if t.startswith(";K1S "):
            if Cfg.STAMP and Cfg.RT:
                n = int(t.split()[1]); out.append(f"    s_memrealtime s[{48+2*n}:{49+2*n}]")
        elif t == ";K1OUT":
            if Cfg.STAMP and Cfg.RT:
                out.append("    s_waitcnt vmcnt(0)")
                out.append("    s_memrealtime s[54:55]")
                out.append("    s_waitcnt lgkmcnt(0)")
                for k in range(8): out.append(f"    v_mov_b32 v{56+k}, s{48+k}")
                out.append("    s_lshr_b32 s56, s28, 6")
                out.append("    s_lshl_b32 s57, s2, 4")
                out.append("    s_add_u32 s56, s56, s57")
                out.append("    s_lshl_b32 s56, s56, 5")
                out.append(f"    s_add_u32 s56, s56, {WS_STAMP + 0x40000}")
                out.append("    v_mov_b32 v64, 0")
                out.append("    s_mov_b64 exec, 1")
                for k in range(2): out.append(f"    buffer_store_dwordx4 v[{56+4*k}:{59+4*k}], v64, s[20:23], s56 offen offset:{16*k}")
                out.append("    s_mov_b64 exec, -1")
        elif t.startswith(";STAMPC "):
            if Cfg.STAMP and Cfg.SC:
                n = int(t.split()[1]); out.append(f"    s_memtime s[{60+2*n}:{61+2*n}]")
        elif t.startswith(";STAMPB "):
            if Cfg.STAMP and Cfg.SB:
                n = int(t.split()[1]); out.append(f"    s_memtime s[{60+2*n}:{61+2*n}]")
        elif t.startswith(";STAMP "):
            if Cfg.STAMP and not Cfg.SB and not Cfg.SC:
                n = int(t.split()[1])
                if Cfg.RT:
                    if n in (0, 5, 7):
                        out.append(f"    s_memtime s[{60+2*n}:{61+2*n}]")
                        m = {0: 1, 5: 2, 7: 3}[n]
                        out.append(f"    s_memrealtime s[{60+2*m}:{61+2*m}]")
                else:
                    out.append(f"    s_memtime s[{60+2*n}:{61+2*n}]")
        elif t == ";STAMPOUT":
            if Cfg.STAMP:
                out.append("    s_waitcnt lgkmcnt(0)")
                for k in range(16): out.append(f"    v_mov_b32 v{100+k}, s{60+k}")
                out.append(f"    s_lshl_b32 s{S_T1}, s2, 3")
                out.append(f"    s_add_u32 s{S_T1}, s{S_T1}, s{S_WAVE}")
                out.append(f"    s_lshl_b32 s{S_T1}, s{S_T1}, 6")
                out.append(f"    s_add_u32 s{S_T1}, s{S_T1}, {WS_STAMP}")
                out.append(f"    v_mov_b32 v116, 0")
                out.append(f"    s_mov_b64 exec, 1")
                for k in range(4): out.append(f"    buffer_store_dwordx4 v[{100+4*k}:{103+4*k}], v116, s[{S_WS}:{S_WS+3}], s{S_T1} offen offset:{16*k}")
                out.append(f"    s_mov_b64 exec, -1")
                out.append("    s_nop 4")
                if Cfg.TL:
                    out += [f"    s_lshl_b32 s{S_T1}, s2, 3", f"    s_add_u32 s{S_T1}, s{S_T1}, s{S_WAVE}", f"    s_lshl_b32 s{S_T1}, s{S_T1}, 8",
                            f"    s_add_u32 s{S_T1}, s{S_T1}, {WS_STAMP + 0x80000}",
                            f"    buffer_store_dword v243, v{V_L4}, s[{S_WS}:{S_WS+3}], s{S_T1} offen"]
                if Cfg.DBG:
                    out += ["    s_load_dwordx2 s[84:85], s[0:1], 64", "    s_waitcnt lgkmcnt(0)",
                            f"    s_sub_u32 s84, s84, {512*(Cfg.DBG-1)}", "    s_subb_u32 s85, s85, 0",
                            "    s_and_b32 s85, s85, 0xffff", "    s_mov_b32 s86, 64", "    s_mov_b32 s87, 0x00020000",
                            "    s_sub_u32 s80, s64, s62", "    s_sub_u32 s81, s66, s64", "    s_sub_u32 s82, s70, s60", "    s_sub_u32 s83, s74, s70",
                            "    v_mov_b32 v100, s80", "    v_mov_b32 v101, s81", "    v_mov_b32 v102, s82", "    v_mov_b32 v103, s83",
                            f"    s_lshl_b32 s80, s2, 4", f"    s_lshl_b32 s81, s{S_WAVE}, 8", "    s_add_u32 s80, s80, s81",
                            "    s_mov_b64 exec, 1", "    buffer_store_dwordx4 v[100:103], v116, s[84:87], s80 offen", "    s_mov_b64 exec, -1", "    s_nop 4"]
        else: out.append(line)
    open(path, "w").write("\n".join(out))

if __name__ == "__main__":
    out = "standalone__edge_featured_mpnn_egc__graph.s"
    for arg in sys.argv[1:]:
        if "=" in arg:
            k, v = arg.split("=")
            if k == "out": out = v
            else: setattr(Cfg, k, eval(v))
    build(out)
    print("wrote", out, "K2_LDS", K2_LDS)
```

```python
import sys, struct

def f2u(x): return struct.unpack("<I", struct.pack("<f", x))[0]
LOG2E = 1.4426950408889634

class Cfg:
    E_NT = False
    STAMP = False
    SB = False
    SC = False
    RT = False
    DROP = ()
    DROPP = ()
    K1XPF = 0
    K1EPF = 0
    RAMP = 0
    DE = 1
    RL = 9
    OPX = 0
    NOSEL = 1
    K1LF = ''
    PFL = ''
    NFL = ''
    OFL = ''
    K1S1 = 0
    IDB = 0
    EFL = ''
    XFL = ''
    K1SC = ''
    MORD = 1
    GAL = 1
    EAL = 4
    HZ = 0
    PT = 0
    PM = 15
    PRIO = 0
    M16 = 0
    MFIRST = 1
    ED = 3
    XD = 2
    TL = 0
    STAG = 0
    STAGD = 0
    ENTW = 4
    DBG = 0
    K1DELAY = 0
    EXTRAK = 0
    AMP = None
    EXTRAK2 = 0
    EXPF = 0
    EB = (0, 4, 8, 11, 16)
    RB = (0, 3, 6, 9, 11, 16)
    RB1 = (0, 3, 6, 9, 11, 16)
    XPF = 0
    EPF = 4
    LATE = 1
    NOE = False
    NOX = False
    ALIGN = 1
    BENCH = 0
    NOVM = False
    NOADD = False
    NOLDS = False
    NOCOMP = False
    PERM = 0
    PSC = ''

NE, NN = 800000, 12500
CH, NP, NB = 3200, 250, 256
SEGSTR = 16384
WS_ENT = 0
WS_OFF = 0x400000
WS_WF = 0x440000
WS_STAMP = 0x480000
WS_SIZE = 0x800000

class Asm:
    def __init__(self): self.l = []
    def __call__(self, s):
        if isinstance(s, (list, tuple)):
            for x in s: self(x)
            return
        for line in s.strip("\n").split("\n"):
            line = line.strip()
            if not line: continue
            if line.endswith(":"): self.l.append(line)
            else: self.l.append("    " + line)
    def text(self): return "\n".join(self.l) + "\n"

def srd(a, d, lo, hi, nrec):
    a(f"""s_mov_b32 s{d}, s{lo}
    s_and_b32 s{d+1}, s{hi}, 0xffff
    s_mov_b32 s{d+2}, {nrec}
    s_mov_b32 s{d+3}, 0x00020000""")

def scan(a, v):
    for sh in (1, 2, 4, 8):
        a("s_nop 1")
        a(f"v_add_u32_dpp v{v}, v{v}, v{v} row_shr:{sh} row_mask:0xf bank_mask:0xf bound_ctrl:0")
    a("s_nop 1")
    a(f"v_add_u32_dpp v{v}, v{v}, v{v} row_bcast:15 row_mask:0xa bank_mask:0xf")
    a("s_nop 1")
    a(f"v_add_u32_dpp v{v}, v{v}, v{v} row_bcast:31 row_mask:0xc bank_mask:0xf")

def kd(name, nv, ns=102):
    return f""".p2align 6
.amdhsa_kernel {name}
  .amdhsa_next_free_vgpr {nv}
  .amdhsa_next_free_sgpr {ns}
  .amdhsa_accum_offset {(nv+3)//4*4}
  .amdhsa_group_segment_fixed_size 0
  .amdhsa_kernarg_size 80
  .amdhsa_user_sgpr_count 2
  .amdhsa_user_sgpr_kernarg_segment_ptr 1
  .amdhsa_system_sgpr_workgroup_id_x 1
.end_amdhsa_kernel
"""

K1_BLOCK = 832
K1_LDS = 2048 + SEGSTR
def gen_k1():
    a = Asm()
    a(f"""
    .globl bin_kernel
    .p2align 8
    .type bin_kernel,@function
bin_kernel:
    s_cmp_ge_u32 s2, {NP}
    s_cbranch_scc1 L_k1_w
    ;K1S 0
    s_load_dwordx4 s[4:7], s[0:1], 16
    s_load_dwordx2 s[8:9], s[0:1], 72
    v_lshlrev_b32 v3, 4, v0
    s_mul_i32 s3, s2, {CH*4}
    v_cmp_gt_u32 vcc, {CH//4}, v0
    v_and_b32 v1, 255, v0
    v_lshlrev_b32 v1, 2, v1
    v_mov_b32 v2, 0
    ds_write_b32 v1, v2
    v_mov_b32 v44, -1
    v_mov_b32 v45, -1
    v_mov_b32 v46, -1
    v_mov_b32 v47, -1
    ds_write_b128 v3, v[44:47] offset:2048
    v_lshlrev_b32 v2, 2, v1
    ds_write_b128 v2, v[44:47] offset:{2048 + 768*16}
    v_readfirstlane_b32 s28, v0
    s_mov_b32 s34, 0x7c
    s_mov_b32 s14, {NE*4}
    s_mov_b32 s15, 0x00020000
    s_mov_b32 s18, {NE*4}
    s_mov_b32 s19, 0x00020000
    s_waitcnt lgkmcnt(0)
    s_mov_b32 s16, s6
    s_and_b32 s17, s7, 0xffff
    s_mov_b32 s12, s4
    s_and_b32 s13, s5, 0xffff
    s_and_saveexec_b64 s[24:25], vcc
    buffer_load_dwordx4 v[4:7], v3, s[16:19], s3 offen{Cfg.K1LF}
    buffer_load_dwordx4 v[8:11], v3, s[12:15], s3 offen{Cfg.K1LF}
    """)
    srd(a, 20, 8, 9, WS_SIZE)
    a(f"""
    s_barrier
    v_lshlrev_b32 v12, 2, v0
    v_mov_b32 v13, 1
    s_waitcnt vmcnt(1)
    ;K1S 1
    """)
    for j in range(4):
        a(f"""v_and_b32 v{14+j}, 7, v{4+j}
        v_lshlrev_b32 v{14+j}, 7, v{14+j}
        v_lshrrev_b32 v{18+j}, 1, v{4+j}
        v_and_or_b32 v{14+j}, v{18+j}, s34, v{14+j}
        ds_add_rtn_u32 v{18+j}, v{14+j}, v13""")
    for j in range(4):
        a(f"""v_lshrrev_b32 v{4+j}, 8, v{4+j}
        v_lshl_or_b32 v{4+j}, v{4+j}, 26, v12""")
    a("s_waitcnt vmcnt(0)")
    for j in range(4):
        a(f"v_lshl_or_b32 v{8+j}, v{8+j}, 12, {j}")
        a(f"v_or_b32 v{4+j}, v{4+j}, v{8+j}")
    a(f"""
    s_waitcnt lgkmcnt(0)
    s_barrier
    s_mov_b64 s[26:27], exec
    s_mov_b64 exec, -1
    {"s_cmp_ge_u32 s28, 64" if Cfg.K1S1 else ""}
    {"s_cbranch_scc1 L_k1_nooff" if Cfg.K1S1 else ""}
    v_and_b32 v22, 63, v0
    v_lshlrev_b32 v23, 4, v22
    ds_read_b128 v[24:27], v23
    s_waitcnt lgkmcnt(0)
    """)
    for j in range(4):
        a(f"""v_add_u32 v{24+j}, 3, v{24+j}
        v_lshrrev_b32 v{24+j}, 2, v{24+j}""")
    a(f"""
    v_add_u32 v28, v24, v25
    v_add_u32 v29, v28, v26
    v_add_u32 v30, v29, v27
    v_mov_b32 v31, v30
    """)
    scan(a, 31)
    a(f"""
    v_sub_u32 v32, v31, v30
    v_add_u32 v33, v32, v24
    v_add_u32 v34, v32, v28
    v_add_u32 v35, v32, v29
    v_readlane_b32 s33, v31, 63
    ds_write_b128 v23, v[32:35] offset:1024
    {"ds_write_b32 v23, v31" if Cfg.K1S1 else ""}
    s_cmp_ge_u32 s28, 64
    s_cbranch_scc1 L_k1_nooff
    v_lshl_or_b32 v36, v24, 16, v32
    v_lshl_or_b32 v37, v25, 16, v33
    v_lshl_or_b32 v38, v26, 16, v34
    v_lshl_or_b32 v39, v27, 16, v35
    s_lshl_b32 s32, s2, 10
    s_add_u32 s32, s32, {WS_OFF}
    buffer_store_dwordx4 v[36:39], v23, s[20:23], s32 offen{Cfg.K1SC}
L_k1_nooff:
    s_waitcnt lgkmcnt(0)
    """)
    if Cfg.K1S1:
        a("""s_barrier
        v_mov_b32 v22, 1008
        ds_read_b32 v22, v22""")
    a("s_mov_b64 exec, s[26:27]")
    for j in range(4):
        a(f"ds_read_b32 v{40+j}, v{14+j} offset:1024")
    for j in range(4):
        a(f"v_lshlrev_b32 v{18+j}, 2, v{18+j}")
    for j in range(4):
        a(f"""s_waitcnt lgkmcnt({3-j})
        v_lshl_add_u32 v{40+j}, v{40+j}, 4, v{18+j}""")
    for j in range(4):
        a(f"ds_write_b32 v{40+j}, v{4+j} offset:2048")
    a(f"""
    s_mov_b64 exec, -1
    s_lshl_b32 s3, s2, 14
    v_add_u32 v2, {K1_BLOCK}, v0
    s_waitcnt lgkmcnt(0)
    {"v_readfirstlane_b32 s33, v22" if Cfg.K1S1 else ""}
    s_barrier
    ds_read_b128 v[44:47], v3 offset:2048
    ds_read_b128 v[36:39], v3 offset:{2048 + K1_BLOCK*16}
    v_cmp_gt_u32 vcc, s33, v2
    s_add_u32 s32, s3, {K1_BLOCK*16}
    s_waitcnt lgkmcnt(1)
    buffer_store_dwordx4 v[44:47], v3, s[20:23], s3 offen{Cfg.K1SC}
    s_and_saveexec_b64 s[24:25], vcc
    s_cbranch_execz L_k1_e
    s_waitcnt lgkmcnt(0)
    buffer_store_dwordx4 v[36:39], v3, s[20:23], s32 offen{Cfg.K1SC}
L_k1_e:
    s_mov_b64 exec, -1
    ;K1S 2
    ;K1OUT
    """)
    for _ in range(Cfg.K1DELAY): a("s_sleep 36")
    a(f"""
    s_endpgm
L_k1_w:
    s_cmp_ge_u32 s2, {NP+3}
    s_cbranch_scc1 L_k1_end
    s_load_dwordx4 s[4:7], s[0:1], 32
    s_load_dwordx2 s[8:9], s[0:1], 48
    s_load_dwordx2 s[10:11], s[0:1], 72
    v_lshrrev_b32 v1, 6, v0
    s_nop 0
    v_readfirstlane_b32 s28, v1
    s_sub_u32 s3, s2, {NP}
    s_mul_i32 s3, s3, 13
    s_add_u32 s28, s28, s3
    s_cmp_ge_u32 s28, 34
    s_cbranch_scc1 L_k1_end
    s_waitcnt lgkmcnt(0)
    s_mov_b32 s12, s8
    s_mov_b32 s13, s9
    s_mov_b32 s14, {144*128}
    s_mov_b32 s33, 0x{f2u(-LOG2E):08x}
    s_cmp_ge_u32 s28, 5
    s_cselect_b32 s30, 1, 0
    s_mul_i32 s31, s30, 5
    s_sub_u32 s31, s28, s31
    s_add_u32 s31, s31, 4
    s_cmp_lt_u32 s28, 10
    s_cbranch_scc1 L_k1_wgo
    s_mov_b32 s33, 1.0
    s_sub_u32 s29, s28, 10
    s_and_b32 s31, s29, 3
    s_lshr_b32 s30, s29, 2
    s_and_b32 s30, s30, 1
    s_cmp_ge_u32 s28, 18
    s_cbranch_scc1 L_k1_w2
    s_mov_b32 s12, s6
    s_mov_b32 s13, s7
    s_mov_b32 s14, {64*128}
    s_branch L_k1_wgo
L_k1_w2:
    s_cmp_lt_u32 s28, 26
    s_cbranch_scc1 L_k1_wgo
    s_mov_b32 s12, s4
    s_mov_b32 s13, s5
    s_mov_b32 s14, {64*128}
L_k1_wgo:
    s_and_b32 s13, s13, 0xffff
    s_mov_b32 s15, 0x00020000
    """)
    srd(a, 20, 10, 11, WS_SIZE)
    a(f"""
    s_lshl_b32 s31, s31, 11
    s_lshl_b32 s30, s30, 6
    s_add_u32 s31, s31, s30
    v_and_b32 v1, 63, v0
    v_lshrrev_b32 v2, 5, v1
    v_lshlrev_b32 v2, 10, v2
    v_and_b32 v3, 31, v0
    v_lshl_add_u32 v2, v3, 1, v2
    """)
    for j in range(8):
        a(f"buffer_load_ushort v{4+j}, v2, s[12:15], s31 offen offset:{j*128}")
    a(f"""
    v_lshlrev_b32 v1, 4, v1
    s_lshl_b32 s32, s28, 10
    s_add_u32 s32, s32, {WS_WF}
    s_waitcnt vmcnt(0)
    """)
    for j in range(8):
        a(f"""v_lshlrev_b32 v{4+j}, 16, v{4+j}
        v_mul_f32 v{4+j}, s33, v{4+j}""")
    for j in range(4):
        a(f"v_cvt_pk_bf16_f32 v{12+j}, v{4+2*j}, v{5+2*j}")
    a(f"""
    buffer_store_dwordx4 v[12:15], v1, s[20:23], s32 offen
L_k1_end:
    s_endpgm
    """)
    return a.text()

L_CNT, L_ST4, L_TM, L_FLAG = 0, 256, 512, 1280
L_TDT = 2048
L_GUARD = 2048 + 1024
LISTN = 3584
LISTA = 4352
L_XL = 4352
L_EL = L_XL + LISTA * 4
PL = 50 * 256
L_XA = L_EL + LISTA * 4
L_AGG = L_XA + PL
L_RING = L_AGG + 2 * PL
AGO = L_AGG - L_XA
XQ = 1056
XSLOT = 4 * XQ
RINGW = XSLOT + 2 * 1024
L_JOB = L_RING + 8 * RINGW
K2_LDS = L_JOB + 8 * XSLOT
NLOC = 49
L_WST = L_XA
assert 34 * 1024 <= 3 * PL
assert L_XA % 256 == 0 and L_AGG + 7168 < 65536 and L_XL % 256 == 0 and L_EL % 256 == 0 and K2_LDS <= 163840
TRASH = 0
assert LISTA * 4 + 3072 <= 8 * RINGW

V_H16, V_C4, V_XLA, V_ELA, V_TD = 1, 2, 3, 4, 5
V_CO, V_ECO, V_RA, V_RE0, V_RE = 6, 7, 8, 9, 10
V_EEN, V_XAD, V_LANE = 11, 12, 13
V_C8 = 14
V_RAC = 15
V_TMP = 16
V_S = 20
V_WG = [28, 48]; V_WV = [68, 84]
V_Z = [100, 132]; V_H = [116, 148]
V_A = 164
V_EA = 180
V_XEN = 184
V_GA = 188
V_GAN = 188
V_C8X = 240
V_EAV = 192
V_GG = 196
NPK = 5
V_E = 100; V_AD = 120; V_RK = 140; V_W = 164
V_JW = 208; V_JX = 224; V_JC = 148
V_OFFS = 244; V_CNT = 245; V_SEG = 246; V_WB = 247; V_REM = 248; V_ONE = 249; V_START = 250; V_J = 251; V_L16 = 252; V_L4 = 253; V_JUNK = 254

S_WAVE, S_R0, S_STEP, S_T, S_T0, S_CNT, S_I, S_SOX = 28, 29, 30, 31, 32, 33, 34, 35
S_ONE = 36
S_XMASK, S_FC, S_FIRST, S_MORE, S_SOE = 38, 39, 41, 42, 43
S_T1, S_T2, S_T3, S_RING = 44, 45, 46, 47
S_X, S_E, S_WS, S_OUT, S_OFFS = 12, 16, 20, 24, 48
S_EW, S_ER, S_ERING, S_FFF, S_BAD = 52, 53, 54, 55, 56
S_TD, S_XD, S_XS, S_SAFE = 40, 57, 58, 59
S_XQ = [12, 88, 92, 96]
S_EC, S_EEND = 52, 53
V_M256 = 242
S_SM = 76
S_EPF = 78
S_F2 = 79
S_EXM = 48
S_VC = 100
S_FM = 50
V_BADV = 241

PAD_X = 16383 << 7
PAD_E = 0x02000000
SOFF_BAD = 0x40000000

def mfmas(blk):
    A, E = V_A, V_EA
    out = []
    z, h = V_Z[blk], V_H[blk]
    for k in range(5):
        c = "0" if k == 0 else f"v[{z}:{z+15}]"
        w = V_WG[blk] + 4 * k
        s = A + 4 * k if k < 4 else E
        out.append(f"v_mfma_f32_32x32x16_bf16 v[{z}:{z+15}], v[{s}:{s+3}], v[{w}:{w+3}], {c}")
    for k in range(4):
        c = "0" if k == 0 else f"v[{h}:{h+15}]"
        w = V_WV[blk] + 4 * k
        out.append(f"v_mfma_f32_32x32x16_bf16 v[{h}:{h+15}], v[{A+4*k}:{A+4*k+3}], v[{w}:{w+3}], {c}")
    return out

def mfmas2(blk):
    A, E = V_A, V_EA
    z, h = V_Z[blk], V_H[blk]
    w = V_WG[blk] + 16
    out = [f"v_mfma_f32_32x32x16_bf16 v[{z}:{z+15}], v[{E}:{E+3}], v[{w}:{w+3}], 0"]
    for k in range(4):
        w = V_WG[blk] + 4 * k
        ka = kb = k
        if Cfg.OPX == 1: ka = kb = (k // 2) + 2 * blk
        if Cfg.OPX == 2: kb = (k + 1) % 4
        if Cfg.OPX == 3: ka = kb = 0
        out.append(f"v_mfma_f32_32x32x16_bf16 v[{z}:{z+15}], v[{A+4*ka}:{A+4*ka+3}], v[{w}:{w+3}], v[{z}:{z+15}]")
        c = "0" if k == 0 else f"v[{h}:{h+15}]"
        if Cfg.OPX != 2: w = V_WV[blk] + 4 * k
        out.append(f"v_mfma_f32_32x32x16_bf16 v[{h}:{h+15}], v[{A+4*kb}:{A+4*kb+3}], v[{w}:{w+3}], {c}")
    return out

def x_dma(xen):
    out = []
    so = f"s{S_BAD}" if Cfg.NOX else "0"
    for q in range(4):
        out.append([f"v_and_or_b32 v{V_XAD}, v{xen+q}, s{S_XMASK}, v{V_CO}",
                    f"buffer_load_dwordx4 v{V_XAD}, s[{S_XQ[q]}:{S_XQ[q]+3}], {so} offen offset:{q*XQ}{Cfg.XFL} lds"])
    return out

def x_m0(): return [f"s_mov_b32 m0, s{S_XS}"]
def x_toggle(): return [f"s_xor_b32 s{S_XS}, s{S_XS}, s{S_XD}"] if Cfg.XD == 3 else []
def vmw():
    return {(3, 4): 6, (3, 3): 5, (2, 3): 1, (2, 2): 0}[(Cfg.XD, Cfg.ED)]

def e_adv():
    if Cfg.ED == 2: return []
    if Cfg.ED == 3: return [f"s_xor_b32 s{S_EC}, s{S_EC}, s{S_EEND}"]
    return [f"s_add_u32 s{S_EC}, s{S_EC}, 1024",
            f"s_cmp_eq_u32 s{S_EC}, s{S_EEND}",
            f"s_cselect_b32 s{S_EC}, s{S_ERING}, s{S_EC}"]

def e_dma(een):
    nt = Cfg.EFL
    so = f"s{S_BAD}" if Cfg.NOE else "0"
    return [f"s_mov_b32 m0, s{S_EC}",
            f"v_lshl_add_u32 v{V_XAD}, v{een}, 5, v{V_ECO}",
            f"buffer_load_dwordx4 v{V_XAD}, s[{S_E}:{S_E+3}], {so} offen{nt} lds"]

def a_read(k):
    return f"ds_read_b128 v[{V_A+4*k}:{V_A+4*k+3}], v{V_RAC} offset:{32*k}"

def e_read():
    return [f"v_add_u32 v{V_RE}, s{S_EC}, v{V_RE0}",
            f"ds_read_b128 v[{V_EA}:{V_EA+3}], v{V_RE}"]

def gan(): return f"v_and_or_b32 v{V_GAN}, s{S_TD}, v{V_M256}, v{V_C8}"

def ea_read(ga):
    return f"ds_read2_b64 v[{V_EAV}:{V_EAV+3}], v{ga} offset0:0 offset1:32"


_du = [0]
def dispatch(a, chk_safe=False):
    _du[0] += 1
    n = _du[0]
    if chk_safe:
        a(f"s_cmp_eq_u32 s{S_SAFE}, 0")
        a(f"s_cbranch_scc1 L_dn{n}")
        a(f"s_bitcmp1_b32 s{S_TD}, 7")
        a("s_cbranch_scc1 L_done")
        a("s_branch L_BG")
        a(f"L_dn{n}:")
    a(f"s_and_b32 s{S_T1}, s{S_TD}, 0xff")
    a("s_cbranch_scc0 L_B0")
    a(f"s_cmp_gt_u32 s{S_T1}, 8")
    a(f"s_cbranch_scc1 L_dh{n}")
    for code, lab in ((1, "L_B1"), (2, "L_B2"), (4, "L_B3"), (8, "L_B4")):
        a(f"s_cmp_eq_u32 s{S_T1}, {code}")
        a(f"s_cbranch_scc1 {lab}")
    a("s_branch L_BG")
    a(f"L_dh{n}:")
    for code, lab in ((16, "L_B5"), (32, "L_B6"), (64, "L_B7"), (128, "L_done")):
        a(f"s_cmp_eq_u32 s{S_T1}, {code}")
        a(f"s_cbranch_scc1 {lab}")
    a("s_branch L_BG")

def gen_body(a, gb):
    gen = gb == "G"
    def stages(blk):
        z, h = V_Z[blk], V_H[blk]
        ex = [f"v_exp_f32 v{z+i}, v{z+i}" for i in range(16)]
        rc = [f"v_rcp_f32 v{z+i}, v{z+i}" for i in range(16)]
        sel = "op_sel_hi:[1,0,1]" if blk == 0 else "op_sel:[0,1,0] op_sel_hi:[1,1,1]"
        st1, st2, st3 = [], [], []
        def flush(acc, ga, extra):
            return [f"v_add_f32 v{acc}, v{acc}, v{acc+1}",
                    f"v_cvt_f64_f32 v[{V_S+2*(extra%4)}:{V_S+2*(extra%4)+1}], v{acc}",
                    f"ds_add_f64 v{ga}, v[{V_S+2*(extra%4)}:{V_S+2*(extra%4)+1}] offset:{AGO + blk*PL + (256*extra if not gen else 0)}"]
        if not gen:
            for i in range(0, 16, 2):
                ea = V_EAV + (2 if (gb and i // 2 >= gb) else 0)
                if Cfg.NOSEL and blk == 1:
                    st2.append(f"v_pk_fma_f32 v[{z+i}:{z+i+1}], v[{z+i}:{z+i+1}], v[{ea+28}:{ea+29}], s[{S_ONE}:{S_ONE+1}] op_sel_hi:[1,0,1]")
                    continue
                st2.append(f"v_pk_fma_f32 v[{z+i}:{z+i+1}], v[{z+i}:{z+i+1}], v[{ea}:{ea+1}], s[{S_ONE}:{S_ONE+1}] {sel}")
            segs = [(0, 8)] if not gb else [(0, gb), (gb, 8)]
            tails = []
            for si, (g0, g1) in enumerate(segs):
                acc = z + 2 * g0
                for i in range(2 * g0, 2 * g1, 2):
                    if i == 2 * g0:
                        st3.append(f"v_pk_mul_f32 v[{acc}:{acc+1}], v[{z+i}:{z+i+1}], v[{h+i}:{h+i+1}]")
                    else:
                        st3.append(f"v_pk_fma_f32 v[{acc}:{acc+1}], v[{z+i}:{z+i+1}], v[{h+i}:{h+i+1}], v[{acc}:{acc+1}]")
                tails.append(flush(acc, V_GA, si))
            for k in range(3):
                for t in tails: st3.append(t[k])
            nf = len(segs)
        else:
            for g in range(8):
                st1.append(f"ds_read_b32 v{V_GG+16+g}, v{V_GG+g} offset:{4*blk}")
            st1.append("s_waitcnt lgkmcnt(0)")
            for g in range(8):
                st1.append(f"v_cndmask_b32 v{V_GG+8+g}, 0, v{V_GG+16+g}, s[{S_SM}:{S_SM+1}]")
                st1.append(f"v_cndmask_b32 v{V_GG+16+g}, v{V_GG+16+g}, 1.0, s[{S_SM}:{S_SM+1}]")
            for i in range(16):
                st1.append(f"v_add_f32 v{z+i}, v{z+i}, v{V_GG+8+i//2}")
                st2.append(f"v_fma_f32 v{z+i}, v{z+i}, v{V_GG+16+i//2}, 1.0")
            for g in range(8):
                acc = z + 2 * g
                st3.append(f"v_pk_mul_f32 v[{acc}:{acc+1}], v[{acc}:{acc+1}], v[{h+2*g}:{h+2*g+1}]")
                st3 += flush(acc, V_GG + g, g)
            nf = 8
        return st1, ex, st2, rc, st3, nf

    inc = 0 if Cfg.BENCH else 1024
    a(".p2align 6")
    a(f"L_B{gb}:")
    if Cfg.TL:
        a("s_memrealtime s[72:73]")
        a("s_waitcnt lgkmcnt(0)")
        a("s_sub_u32 s72, s72, s62")
        a(f"s_mov_b32 m0, s{S_I}")
        a("s_nop 0")
        a("v_writelane_b32 v243, s72, m0")
    if Cfg.PT == 1: a("s_setprio 1")
    if Cfg.PT == 2: a("s_setprio 0")
    st1, ex, st2, rc, st3, nf = stages(0)
    mf = mfmas2(1) if Cfg.MORD else mfmas(1)
    if Cfg.HZ == 4: a("s_nop 15"); a("s_nop 15")
    if gen:
        a(f"v_mov_b32 v{V_GG}, v{V_GAN}")
        for g in range(1, 8):
            a(f"s_bitcmp1_b32 s{S_TD}, {g-1}")
            a(f"s_cselect_b32 s{S_T1}, 256, 0")
            a(f"v_add_u32 v{V_GG+g}, s{S_T1}, v{V_GG+g-1}")
    a(st1)
    if Cfg.BENCH:
        rl = [f"s_cmp_ge_u32 s{S_I}, {Cfg.BENCH}", f"s_cselect_b32 s{S_TD}, 0x80, s{S_TD}"]
    else:
        rl = [f"v_readlane_b32 s{S_TD}, v{V_TD}, s{S_I}"]
    fill = [f"s_add_u32 s{S_I}, s{S_I}, 1",
            f"ds_read_b128 v[{V_XEN}:{V_XEN+3}], v{V_XLA}",
            f"ds_read_b32 v{V_EEN}, v{V_ELA}"] + x_toggle() + e_adv() + [rl]
    eb = Cfg.EB
    for i in range(4):
        a(mf[i])
        for e in ex[eb[i]:eb[i+1]]:
            a(e)
            if fill: a(fill.pop(0))
    a("s_waitcnt lgkmcnt(2)")
    if (Cfg.PT == 3 and Cfg.PM >> 0 & 1): a("s_setprio 1")
    a(st2)
    if (Cfg.PT == 3 and Cfg.PM >> 0 & 1): a("s_setprio 0")
    a(mf[4]); a(rc[0])
    if Cfg.XD == 3: a(f"v_add_u32 v{V_RAC}, s{S_XS}, v{V_RA}")
    a(rc[1])
    a(e_read()[0])
    a(rc[2])
    rb = Cfg.RB
    a(rc[3:rb[1]])
    last_use = {0: 2, 1: 4, 2: 6, 3: 8} if Cfg.MORD else {0: 5, 1: 6, 2: 7, 3: 8}
    done = set()
    def reads_after(n):
        if n < Cfg.RL: return
        if "w" not in done:
            a(f"s_waitcnt vmcnt({vmw()})")
            a(e_read()[1]); done.add("w")
        for k in range(4):
            if k not in done and last_use[k] < n:
                a(a_read(k)); done.add(k)
    reads_after(4)
    for i in range(1, 5):
        a(mf[4+i])
        reads_after(4 + i)
        a(rc[rb[i]:rb[i+1]])
        if i == 3 and Cfg.NOSEL and not gen:
            a(f"v_mov_b32 v{V_EAV+28}, v{V_EAV+1}")
            if gb: a(f"v_mov_b32 v{V_EAV+30}, v{V_EAV+3}")
    a("s_setprio 1" if (Cfg.PT == 3 and Cfg.PM >> 1 & 1) else "s_nop 0")
    a(st3[0])
    reads_after(9)
    a(st3[1:])
    if (Cfg.PT == 3 and Cfg.PM >> 1 & 1): a("s_setprio 0")
    if Cfg.PT == 1: a("s_setprio 0")
    if Cfg.PT == 2: a("s_setprio 1")
    st1, ex, st2, rc, st3, nf1 = stages(1)
    mf = mfmas2(0) if Cfg.MORD else mfmas(0)
    if Cfg.HZ == 3: a("s_nop 15"); a("s_nop 15")
    a(st1)
    xd = x_dma(V_XEN)
    for i in range(4):
        if not Cfg.MORD: a(f"s_waitcnt lgkmcnt({3-i+nf})")
        elif i == 0: a(f"s_waitcnt lgkmcnt({2+nf})")
        elif i == (3 if Cfg.DE != 2 else 1): a(f"s_waitcnt lgkmcnt({nf})")
        a(mf[i])
        exs = ex[eb[i]:eb[i+1]]
        if Cfg.DE == 1 and i == 3:
            a(x_m0())
            for q in range(4):
                a(exs[q]); a(xd[q])
            a(exs[4:])
        elif Cfg.DE == 2 and i >= 1:
            if i == 1: a(x_m0())
            a(exs[0]); a(xd[i-1]); a(exs[1:])
        else: a(exs)
    if Cfg.DE == 0:
        a(x_m0())
        a(xd[0])
    if Cfg.DE == 2: a(xd[3])
    if Cfg.DE: a(e_dma(V_EEN)); xd = [[], [], [], []]
    if (Cfg.PT == 3 and Cfg.PM >> 2 & 1): a("s_setprio 1")
    a(st2)
    if (Cfg.PT == 3 and Cfg.PM >> 2 & 1): a("s_setprio 0")
    rb = Cfg.RB1
    a(mf[4])
    a(rc[rb[0]:rb[1]])
    for i in range(1, 4):
        a(mf[4+i])
        a(xd[i]); a(rc[rb[i]:rb[i+1]])
        if i == 2: a(f"v_add_u32 v{V_XLA}, {inc}, v{V_XLA}")
        if i == 3: a(f"v_add_u32 v{V_ELA}, {inc}, v{V_ELA}")
    a(mf[8])
    if not Cfg.DE: a(e_dma(V_EEN))
    a(rc[rb[4]:rb[5]])
    a("s_setprio 1" if (Cfg.PT == 3 and Cfg.PM >> 3 & 1) else "s_nop 0")
    a(st3)
    if (Cfg.PT == 3 and Cfg.PM >> 3 & 1): a("s_setprio 0")
    a(gan())
    a(ea_read(V_GAN))
    dispatch(a, gen)

def gen_loop(a):
    if Cfg.PRIO:
        a(f"""s_cmp_lt_u32 s{S_WAVE}, 4
        s_cbranch_scc1 L_noprio
        s_setprio {Cfg.PRIO}
        L_noprio:""")
    a(";STAMP 5")
    a(";STAMPC 7")
    i0 = len(a.l)
    dispatch(a, True)
    for gb in (0, 1, 2, 3, 4, 5, 6, 7, "G"):
        gen_body(a, gb)
    a("L_done:")
    def keep(x):
        t = x.strip()
        if Cfg.NOVM and (t.startswith("buffer_load")): return False
        if Cfg.NOADD and (t.startswith("ds_add_f64") or t.startswith("v_cvt_f64") or t.startswith("v_add_f32")): return False
        if Cfg.NOLDS and t.startswith("ds_"): return False
        if t.split()[0] in Cfg.DROP: return False
        if any(t.startswith(p) for p in Cfg.DROPP): return False
        if Cfg.NOCOMP and t.split()[0] in ("v_exp_f32", "v_rcp_f32", "v_pk_add_f32", "v_pk_fma_f32", "v_pk_mul_f32", "v_mfma_f32_32x32x16_bf16"): return False
        return True
    a.l[i0:] = [x for x in a.l[i0:] if keep(x)]
    if Cfg.IDB:
        out = []
        pre = []
        if Cfg.IDB & 2:
            for r in list(range(28, 44)) + list(range(48, 64)) + list(range(68, 100)):
                pre.append(f"    v_mov_b32 v{r}, 0")
            pre.append("    s_mov_b64 exec, 0x10001")
            for r in (28, 33, 48, 53, 68, 73, 84, 89):
                pre.append(f"    v_mov_b32 v{r}, 0x3f80")
            pre.append("    s_mov_b64 exec, -1")
        for x in a.l[i0:]:
            t = x.strip()
            if t.startswith("v_mfma") and (", v[172:175]," in t or ", v[176:179]," in t): continue
            out.append(x)
            if Cfg.IDB & 4:
                if t.startswith("buffer_load_dwordx4") and "offset:" in t: out.append(x)
                if t.startswith("ds_read_b128 v[1") and "v15 " in t:
                    out.append(x.replace("v[164:167]", "v[208:211]").replace("v[168:171]", "v[212:215]").replace("v[172:175]", "v[216:219]").replace("v[176:179]", "v[220:223]"))
        a.l[i0:] = pre + out
    if Cfg.M16:
        import re
        out = []
        cnt = 0
        for x in a.l[i0:]:
            m = re.match(r"\s*v_mfma_f32_32x32x16_bf16 v\[(\d+):\d+\], (v\[\d+:\d+\]), (v\[\d+:\d+\]), (.*)", x)
            if m:
                d = int(m.group(1)); cnt += 1
                for t in range(2):
                    dd = d + 4 * ((2 * cnt + t) % 4)
                    c = "0" if m.group(4) == "0" else f"v[{dd}:{dd+3}]"
                    out.append(f"    v_mfma_f32_16x16x32_bf16 v[{dd}:{dd+3}], {m.group(2)}, {m.group(3)}, {c}")
            else: out.append(x)
        a.l[i0:] = out

def gen_k2():
    assert Cfg.XD == 2 and Cfg.ED in (2, 3)
    a = Asm()
    WDMA_WAIT = 4 + (1 if Cfg.XPF else 0)
    a(f"""
    .globl main_kernel
    .p2align 8
    .type main_kernel,@function
main_kernel:
    s_cmp_ge_u32 s2, {NB}
    s_cbranch_scc1 L_k2_end
    ;STAMP 0
    s_load_dwordx2 s[10:11], s[0:1], 72
    s_load_dwordx4 s[4:7], s[0:1], 0
    s_load_dwordx2 s[8:9], s[0:1], 56
    v_lshrrev_b32 v{V_TMP}, 6, v0
    v_and_b32 v{V_LANE}, 63, v0
    v_readfirstlane_b32 s{S_WAVE}, v{V_TMP}
    v_lshrrev_b32 v{V_WB}, 1, v0
    v_lshlrev_b32 v{V_TMP}, 10, v{V_WB}
    s_and_b32 s{S_T1}, s2, 7
    s_lshl_b32 s{S_T1}, s{S_T1}, 5
    s_lshr_b32 s{S_T2}, s2, 3
    s_add_u32 s{S_T1}, s{S_T1}, s{S_T2}
    s_lshl_b32 s{S_T1}, s{S_T1}, 2
    s_mov_b32 s{S_OFFS+2}, {NP*1024}
    s_mov_b32 s{S_OFFS+3}, 0x00020000
    v_and_b32 v{V_J}, 1, v0
    v_lshlrev_b32 v{V_ECO}, 4, v{V_J}
    v_lshl_add_u32 v{V_SEG}, v{V_WB}, 14, v{V_ECO}
    v_lshrrev_b32 v{V_H16}, 5, v{V_LANE}
    v_lshlrev_b32 v{V_H16}, 4, v{V_H16}
    v_and_b32 v{V_C4}, 31, v0
    v_lshlrev_b32 v{V_C4}, 2, v{V_C4}
    v_lshlrev_b32 v{V_C8}, 1, v{V_C4}
    v_lshlrev_b32 v{V_L16}, 4, v{V_LANE}
    v_lshlrev_b32 v{V_L4}, 2, v{V_LANE}
    s_waitcnt lgkmcnt(0)
    s_add_u32 s{S_OFFS}, s10, {WS_OFF}
    s_addc_u32 s{S_OFFS+1}, s11, 0
    s_and_b32 s{S_OFFS+1}, s{S_OFFS+1}, 0xffff
    buffer_load_dword v{V_OFFS}, v{V_TMP}, s[{S_OFFS}:{S_OFFS+3}], s{S_T1} offen
    """)
    srd(a, S_WS, 10, 11, WS_SIZE)
    srd(a, S_X, 4, 5, NN * 128)
    srd(a, S_E, 6, 7, NE * 32)
    srd(a, S_OUT, 8, 9, NN * 128)
    a(f"""
    v_mov_b32 v{V_ONE}, 1
    s_mov_b32 s{S_ONE}, 1.0
    s_mov_b32 s{S_ONE+1}, 1.0
    s_mov_b32 s{S_XMASK}, {PAD_X}
    s_mov_b32 s{S_FC}, 0xfc
    s_mov_b32 s{S_FFF}, 0xfff
    s_mov_b32 s{S_BAD}, {SOFF_BAD}
    s_mov_b32 s{S_R0}, 0
    s_mov_b32 s{S_EPF}, {Cfg.EPF << 26}
    v_mov_b32 v{V_BADV}, 0x40000000
    s_mov_b32 s{S_STEP}, {2*NPK}
    s_mov_b32 s{S_FIRST}, 1
    s_mov_b32 s{S_F2}, 1
    s_mul_i32 s{S_RING}, s{S_WAVE}, {RINGW}
    s_add_u32 s{S_RING}, s{S_RING}, {L_RING}
    s_add_u32 s{S_ERING}, s{S_RING}, {XSLOT}
    s_add_u32 s{S_EEND}, s{S_ERING}, {3072 if Cfg.ED == 4 else 1024}
    {"s_xor_b32 s%d, s%d, s%d" % (S_EEND, S_EEND, S_ERING) if Cfg.ED == 3 else ""}
    s_mul_i32 s{S_XD}, s{S_WAVE}, {XSLOT}
    s_add_u32 s{S_XD}, s{S_XD}, {L_JOB}
    v_mov_b32 v{V_M256}, 0xffffff00
    {'v_mov_b32 v243, 0' if Cfg.TL else ''}
    """)
    for q in range(1, 4):
        d = S_XQ[q]
        a(f"""s_sub_u32 s{d}, s4, {q*XQ}
        s_subb_u32 s{d+1}, s5, 0
        s_and_b32 s{d+1}, s{d+1}, 0xffff
        s_mov_b32 s{d+2}, {NN*128 + q*XQ}
        s_mov_b32 s{d+3}, 0x00020000""")
    a(f"""
    v_and_b32 v{V_CO}, 7, v0
    v_lshlrev_b32 v{V_CO}, 4, v{V_CO}
    v_xor_b32 v{V_CO}, v{V_CO}, v{V_H16}
    v_and_b32 v{V_TMP+2}, 25, v0
    v_bfe_u32 v{V_TMP}, v0, 1, 1
    v_lshl_or_b32 v{V_TMP+2}, v{V_TMP}, 2, v{V_TMP+2}
    v_bfe_u32 v{V_TMP}, v0, 2, 1
    v_lshl_or_b32 v{V_TMP+2}, v{V_TMP}, 1, v{V_TMP+2}
    v_lshl_add_u32 v{V_RE0}, v{V_TMP+2}, 5, v{V_H16}
    v_and_b32 v{V_TMP}, 3, v{V_TMP+2}
    v_mul_u32_u24 v{V_TMP}, {XQ}, v{V_TMP}
    v_lshrrev_b32 v{V_TMP+1}, 2, v{V_TMP+2}
    v_lshl_add_u32 v{V_TMP}, v{V_TMP+1}, 7, v{V_TMP}
    v_and_b32 v{V_TMP+1}, 16, v0
    v_xor_b32 v{V_TMP+1}, v{V_TMP+1}, v{V_H16}
    v_add_u32 v{V_RA}, v{V_TMP}, v{V_TMP+1}
    v_mov_b32 v{V_TMP}, 0
    v_mov_b32 v{V_TMP+1}, {L_GUARD}
    ds_write_b32 v{V_TMP+1}, v{V_TMP}
    v_mul_u32_u24 v{V_WB}, {CH}, v{V_WB}
L_k2_init:
    v_mov_b32 v{V_RK}, 0
    v_lshlrev_b32 v{V_TMP+2}, 2, v0
    ds_write_b32 v{V_TMP+2}, v{V_RK}
    v_mov_b32 v{V_AD}, {PAD_X}
    v_mov_b32 v{V_AD+1}, {PAD_X}
    v_mov_b32 v{V_AD+2}, {PAD_X}
    v_mov_b32 v{V_AD+3}, {PAD_X}
    v_mov_b32 v{V_AD+4}, {PAD_E}
    v_mov_b32 v{V_AD+5}, {PAD_E}
    v_mov_b32 v{V_AD+6}, {PAD_E}
    v_mov_b32 v{V_AD+7}, {PAD_E}
    v_lshlrev_b32 v{V_TMP+2}, 4, v0
    ds_write_b128 v{V_TMP+2}, v[{V_AD}:{V_AD+3}] offset:{L_XL}
    ds_write_b128 v{V_TMP+2}, v[{V_AD}:{V_AD+3}] offset:{L_XL+8192}
    ds_write_b128 v{V_TMP+2}, v[{V_AD}:{V_AD+3}] offset:{L_XL+LISTA*4-8192}
    ds_write_b128 v{V_TMP+2}, v[{V_AD+4}:{V_AD+7}] offset:{L_EL}
    ds_write_b128 v{V_TMP+2}, v[{V_AD+4}:{V_AD+7}] offset:{L_EL+8192}
    ds_write_b128 v{V_TMP+2}, v[{V_AD+4}:{V_AD+7}] offset:{L_EL+LISTA*4-8192}
    s_waitcnt lgkmcnt(0)
    s_barrier
    s_cmp_eq_u32 s{S_FIRST}, 0
    s_cbranch_scc1 L_k2_round
    s_waitcnt vmcnt(0)
    v_and_b32 v{V_TMP}, 0xffff, v{V_OFFS}
    v_lshrrev_b32 v{V_CNT}, 16, v{V_OFFS}
    v_lshl_add_u32 v{V_SEG}, v{V_TMP}, 4, v{V_SEG}
L_k2_round:
    ;STAMP 1
    s_add_u32 s{S_T1}, s{S_R0}, s{S_STEP}
    v_min_u32 v{V_REM}, s{S_T1}, v{V_CNT}
    v_subrev_u32 v{V_REM}, s{S_R0}, v{V_REM}
    v_sub_u32 v{V_REM}, v{V_REM}, v{V_J}
    s_lshl_b32 s{S_T2}, s{S_R0}, 4
    """)
    for k in range(NPK):
        a(f"""v_cmpx_lt_i32 vcc, {2*k}, v{V_REM}
        s_cbranch_execz L_k2_ld_done
        buffer_load_dwordx4 v[{V_E+4*k}:{V_E+4*k+3}], v{V_SEG}, s[{S_WS}:{S_WS+3}], s{S_T2} offen offset:{32*k}{Cfg.NFL}""")
    a(f"""
L_k2_ld_done:
    s_mov_b64 exec, -1
    s_cmp_eq_u32 s{S_FIRST}, 0
    s_cbranch_scc1 L_k2_now
    s_mov_b32 s{S_FIRST}, 0
    """)
    a(f"""
    s_lshl_b32 s{S_T0}, s{S_WAVE}, 10
    s_add_u32 s{S_T2}, s{S_T0}, {WS_WF}
    s_add_u32 s{S_T0}, s{S_T0}, {L_WST}
    """)
    for k in range(5):
        if k == 4:
            a(f"""s_cmp_ge_u32 s{S_WAVE}, 2
            s_cbranch_scc1 L_k2_now0""")
        a(f"""s_add_u32 m0, s{S_T0}, {8192*k}
        s_add_u32 s{S_T3}, s{S_T2}, {8192*k}
        buffer_load_dwordx4 v{V_L16}, s[{S_WS}:{S_WS+3}], s{S_T3} offen lds""")
    a(f"""
L_k2_now0:
    """)
    a(f"""
    s_lshr_b32 s{S_T2}, s{S_WAVE}, 2
    s_lshl_b32 s{S_T2}, s{S_T2}, 13
    s_add_u32 s{S_T2}, s{S_T2}, s2
    v_lshrrev_b32 v{V_TMP}, 4, v{V_LANE}
    v_lshl_add_u32 v{V_TMP}, v{V_TMP}, 11, s{S_T2}
    v_bfe_u32 v{V_TMP+1}, v0, 3, 1
    v_lshl_add_u32 v{V_TMP}, v{V_TMP+1}, 9, v{V_TMP}
    v_lshlrev_b32 v{V_JX}, 7, v{V_TMP}
    v_add_u32 v{V_JX+1}, {256*128}, v{V_JX}
    v_add_u32 v{V_JX+2}, {1024*128}, v{V_JX}
    v_add_u32 v{V_JX+3}, {1280*128}, v{V_JX}
    """)
    nox = Cfg.NOX; Cfg.NOX = False
    a(f"s_mov_b32 m0, s{S_XD}"); a(x_dma(V_JX))
    Cfg.NOX = nox
    a(f"""
    ;STAMP 2
    s_waitcnt vmcnt(4)
    s_branch L_k2_cnt
L_k2_now:
    s_waitcnt vmcnt(0)
L_k2_cnt:
    ;STAMP 3
    ;STAMPB 0
    v_cmpx_lt_u32 vcc, s{S_T1}, v{V_CNT}
    v_mov_b32 v{V_TMP}, {L_FLAG}
    ds_write_b32 v{V_TMP}, v{V_ONE}
    s_mov_b64 exec, -1
    """)
    for k in range(NPK):
        a(f"v_cmpx_lt_i32 vcc, {2*k}, v{V_REM}")
        a("s_cbranch_execz L_k2_cnt_done")
        for m in range(4):
            sl = 4 * k + m
            a(f"v_and_b32_sdwa v{V_AD+sl}, v{V_E+sl}, s{S_FC} dst_sel:DWORD dst_unused:UNUSED_PAD src0_sel:BYTE_3 src1_sel:DWORD")
            a(f"ds_add_rtn_u32 v{V_RK+sl}, v{V_AD+sl}, v{V_ONE} offset:{L_CNT}")
        for m in range(4):
            sl = 4 * k + m
            a(f"v_lshrrev_b32 v{V_W+2*sl}, 5, v{V_E+sl}")
            a(f"v_and_b32 v{V_W+2*sl+1}, s{S_FFF}, v{V_E+sl}")
            a(f"v_add_u32 v{V_W+2*sl+1}, v{V_W+2*sl+1}, v{V_WB}")
        if Cfg.EPF:
            for m in range(4):
                a(f"v_cmp_gt_u32 s[{80+2*m}:{81+2*m}], s{S_EPF}, v{V_E+4*k+m}")
            for m in range(4):
                a(f"v_lshlrev_b32 v{V_TMP+m}, 5, v{V_W+2*(4*k+m)+1}")
            for m in range(4):
                a(f"v_cndmask_b32 v{V_TMP+m}, v{V_BADV}, v{V_TMP+m}, s[{80+2*m}:{81+2*m}]")
                a(f"buffer_load_dword v{V_JUNK}, v{V_TMP+m}, s[{S_E}:{S_E+3}], 0 offen{Cfg.PFL}")
            if Cfg.EXPF:
                for m in range(4):
                    a(f"v_and_b32 v{V_TMP+m}, s{S_XMASK}, v{V_W+2*(4*k+m)}")
                for m in range(4):
                    a(f"v_cndmask_b32 v{V_TMP+m}, v{V_BADV}, v{V_TMP+m}, s[{80+2*m}:{81+2*m}]")
                    a(f"buffer_load_dword v{V_JUNK}, v{V_TMP+m}, s[{S_X}:{S_X+3}], 0 offen")
    a(f"""
L_k2_cnt_done:
    ;STAMPB 1
    s_mov_b64 exec, -1
    v_mov_b32 v{V_TMP+2}, {L_FLAG}
    v_cmp_gt_u32 vcc, {NLOC}, v{V_LANE}
    s_waitcnt lgkmcnt(0)
    ;STAMPB 2
    s_barrier
    ;STAMPB 3
    ds_read_b32 v{V_TMP}, v{V_L4} offset:{L_CNT}
    ds_read_b32 v{V_TMP+2}, v{V_TMP+2}
    s_waitcnt lgkmcnt(0)
    v_readfirstlane_b32 s{S_MORE}, v{V_TMP+2}
    v_add_u32 v{V_TMP}, 3, v{V_TMP}
    v_and_b32 v{V_TMP}, -4, v{V_TMP}
    v_max_u32 v{V_TMP}, 4, v{V_TMP}
    v_cndmask_b32 v{V_TMP}, 0, v{V_TMP}, vcc
    v_mov_b32 v{V_TMP+1}, v{V_TMP}
    """)
    scan(a, V_TMP + 1)
    a(f"""
    s_nop 1
    v_readlane_b32 s{S_T}, v{V_TMP+1}, 63
    v_sub_u32 v{V_START}, v{V_TMP+1}, v{V_TMP}
    s_cmp_le_u32 s{S_T}, {LISTN}
    s_cbranch_scc1 L_k2_fits
    s_mov_b32 s{S_STEP}, 2
    s_barrier
    s_branch L_k2_init
L_k2_fits:
    ;STAMPB 4
    v_mov_b32 v{V_TMP+1}, {L_RING + TRASH - L_XL}
    v_lshlrev_b32 v{V_TMP}, 2, v{V_START}
    v_cndmask_b32 v{V_TMP}, v{V_TMP+1}, v{V_TMP}, vcc
    ds_write_b32 v{V_L4}, v{V_TMP} offset:{L_ST4}
    v_lshrrev_b32 v{V_TMP}, 5, v{V_START}
    v_lshlrev_b32 v{V_TMP}, 2, v{V_TMP}
    v_bfe_u32 v{V_TMP+1}, v{V_START}, 2, 3
    v_lshlrev_b32 v{V_TMP+1}, v{V_TMP+1}, v{V_ONE}
    s_mov_b64 exec, vcc
    ds_or_b32 v{V_TMP}, v{V_TMP+1} offset:{L_TM}
    s_mov_b64 exec, -1
    v_cndmask_b32 v{V_START}, -1, v{V_START}, vcc
    s_add_u32 s{S_T}, s{S_T}, 31
    s_lshr_b32 s{S_T}, s{S_T}, 5
    s_add_u32 s{S_CNT}, s{S_T}, 7
    s_sub_u32 s{S_CNT}, s{S_CNT}, s{S_WAVE}
    s_lshr_b32 s{S_CNT}, s{S_CNT}, 3
    v_lshlrev_b32 v{V_TMP}, 1, v{V_L4}
    s_waitcnt lgkmcnt(0)
    ds_read_b64 v[{V_S}:{V_S+1}], v{V_TMP} offset:{L_TM}
    """)
    for k in range(NPK):
        a(f"v_cmpx_lt_i32 vcc, {2*k}, v{V_REM}")
        a("s_cbranch_execz L_k2_rd_done")
        if k >= 3: a("s_waitcnt lgkmcnt(8)")
        for m in range(4):
            sl = 4 * k + m
            a(f"ds_read_b32 v{V_AD+sl}, v{V_AD+sl} offset:{L_ST4}")
    a(f"""
L_k2_rd_done:
    s_mov_b64 exec, -1
    s_waitcnt lgkmcnt(0)
    ;STAMPB 5
    v_bcnt_u32_b32 v{V_S+2}, v{V_S}, 0
    v_bcnt_u32_b32 v{V_S+3}, v{V_S+1}, v{V_S+2}
    v_mov_b32 v{V_TMP+3}, v{V_S+3}
    """)
    for k in range(NPK):
        a(f"v_cmpx_lt_i32 vcc, {2*k}, v{V_REM}")
        a("s_cbranch_execz L_k2_pl_done")
        for m in range(4):
            sl = 4 * k + m
            a(f"v_lshl_add_u32 v{V_AD+sl}, v{V_RK+sl}, 2, v{V_AD+sl}")
            a(f"ds_write2st64_b32 v{V_AD+sl}, v{V_W+2*sl}, v{V_W+2*sl+1} offset0:{L_XL//256} offset1:{L_EL//256}")
    a(f"""
L_k2_pl_done:
    ;STAMPB 6
    s_mov_b64 exec, -1
    s_nop 3
    """)
    scan(a, V_TMP + 3)
    a(f"""
    v_sub_u32 v{V_TMP+3}, v{V_TMP+3}, v{V_S+3}
    v_and_b32 v{V_S+4}, 1, v{V_S}
    v_add_u32 v{V_TMP+3}, {L_XA//256 - 1}, v{V_TMP+3}
    v_add_u32 v{V_S+4}, v{V_S+4}, v{V_TMP+3}
    v_and_b32 v{V_S+5}, 1, v{V_S+1}
    v_add3_u32 v{V_S+5}, v{V_S+5}, v{V_TMP+3}, v{V_S+2}
    v_lshrrev_b32 v{V_S}, 1, v{V_S}
    v_lshrrev_b32 v{V_S+1}, 1, v{V_S+1}
    v_lshl_or_b32 v{V_S+4}, v{V_S+4}, 8, v{V_S}
    v_lshl_or_b32 v{V_S+5}, v{V_S+5}, 8, v{V_S+1}
    ds_write_b64 v{V_TMP}, v[{V_S+4}:{V_S+5}] offset:{L_TDT}
    s_lshl_b32 s{S_T1}, s{S_WAVE}, 2
    v_and_b32 v{V_TMP+1}, 15, v{V_LANE}
    v_lshl_add_u32 v{V_TMP+1}, v{V_TMP+1}, 5, s{S_T1}
    v_cmp_gt_u32 vcc, s{S_CNT}, v{V_LANE}
    s_lshl_b32 s{S_T1}, s{S_WAVE}, 7
    s_add_u32 s{S_T2}, s{S_T1}, {L_XL}
    s_add_u32 s{S_T1}, s{S_T1}, {L_EL}
    v_lshrrev_b32 v{V_XLA}, 3, v{V_LANE}
    v_lshl_add_u32 v{V_XLA}, v{V_XLA}, 4, s{S_T2}
    v_lshrrev_b32 v{V_ELA}, 1, v{V_LANE}
    v_lshl_add_u32 v{V_ELA}, v{V_ELA}, 2, s{S_T1}
    s_waitcnt lgkmcnt(0)
    ds_read_b32 v{V_TD}, v{V_TMP+1} offset:{L_TDT}
    s_mov_b32 s{S_EC}, s{S_ERING}
    s_mov_b32 s{S_I}, 0
    s_mov_b32 s{S_XS}, s{S_RING}
    s_waitcnt lgkmcnt(0)
    s_mov_b64 s[{S_VC}:{S_VC+1}], vcc
    s_barrier
    ;STAMP 4
    ;STAMPB 7
    ;STAMPC 0
    """)
    PX = V_Z[1]
    PE = V_Z[1] + 12
    def valid(sreg, t):
        a(f"s_cmp_lt_u32 {t}, s{S_CNT}")
        a(f"s_cselect_b32 s{sreg}, 0, s{S_BAD}")
    for t in range(4):
        a(f"ds_read_b32 v{PE+t}, v{V_ELA} offset:{1024*t}")
    for t in range(3):
        a(f"ds_read_b128 v[{PX+4*t}:{PX+4*t+3}], v{V_XLA} offset:{1024*t}")
    a(f"v_add_u32 v{V_XLA}, {1024*Cfg.XD}, v{V_XLA}")
    a(f"v_add_u32 v{V_ELA}, {1024*Cfg.ED}, v{V_ELA}")
    def first():
        a(f"s_mov_b32 m0, s{S_ERING}")
        a(e_dma(PE)[1:])
        a(f"s_mov_b32 m0, s{S_RING}")
        a(x_dma(PX))
    a("s_waitcnt lgkmcnt(2)")
    a(e_adv()); a(x_toggle())
    if Cfg.STAG == 2:
        a(f"""s_cmp_lt_u32 s{S_WAVE}, 4
        s_cbranch_scc1 L_k2_st1
        s_waitcnt vmcnt(0)
        s_branch L_k2_st2
        L_k2_st1:""")
    first()
    if Cfg.STAG == 2: a("L_k2_st2:")
    a(";STAMPC 1")
    def rest():
        a("s_waitcnt lgkmcnt(0)")
        if Cfg.ED >= 3: a(e_dma(PE + 1)); a(e_adv())
        if Cfg.XD == 3:
            a(x_m0()); a(x_dma(PX + 4))
            a(x_toggle())
        if Cfg.ED == 4: a(e_dma(PE + 2)); a(e_adv())
    def tdfin():
        a(f"""
        s_cmp_lg_u32 s{S_SAFE}, 0
        s_cselect_b64 s[{S_SM}:{S_SM+1}], -1, 0
        v_mov_b32 v{V_TMP}, 0x80
        v_cndmask_b32 v{V_TD}, v{V_TMP}, v{V_TD}, s[{S_VC}:{S_VC+1}]
        s_nop 0
        v_readfirstlane_b32 s{S_TD}, v{V_TD}
        s_nop 1
        """)
        a(gan())
    a(f"""
    s_cmp_eq_u32 s{S_F2}, 0
    s_cbranch_scc1 L_k2_nojob1
    s_and_b32 s{S_T2}, s{S_WAVE}, 3
    s_lshl_b32 s{S_T2}, s{S_T2}, 12
    s_add_u32 s{S_T2}, s{S_T2}, {L_WST + 18*1024}
    v_add_u32 v{V_S+6}, s{S_T2}, v{V_L16}
    v_add_u32 v{V_RAC}, s{S_XD}, v{V_RA}
    """)
    for k in range(4):
        a(f"ds_read_b128 v[{V_JW+4*k}:{V_JW+4*k+3}], v{V_S+6} offset:{1024*k}")
    for f in range(18):
        a(f"ds_read_b128 v[{28+4*f}:{31+4*f}], v{V_L16} offset:{L_WST + 1024*f}")
    a(f"""
    v_mov_b32 v{V_TMP+2}, 0x42300000
    v_mov_b32 v{V_TMP+3}, {L_GUARD}
    s_waitcnt vmcnt(5)
    ;STAMPC 2
    """)
    for k in range(4): a(a_read(k))
    for k in range(4):
        c = "0" if k == 0 else f"v[{V_JC}:{V_JC+15}]"
        a(f"s_waitcnt lgkmcnt({3-k})")
        a(f"v_mfma_f32_32x32x16_bf16 v[{V_JC}:{V_JC+15}], v[{V_A+4*k}:{V_A+4*k+3}], v[{V_JW+4*k}:{V_JW+4*k+3}], {c}")
    rest()
    a(f"""
    ;STAMPC 3
    ; dest row base: (mt*32 + 4h)*256 + c8 ; reg i adds ((i/4)*8 + i%4)*256
    s_lshr_b32 s{S_T1}, s{S_WAVE}, 2
    s_lshl_b32 s{S_T1}, s{S_T1}, 13
    s_and_b32 s{S_T2}, s{S_WAVE}, 1
    v_lshlrev_b32 v{V_S}, 6, v{V_H16}
    v_add3_u32 v{V_S}, v{V_S}, v{V_C8}, s{S_T1}
    s_mov_b32 s{S_T3}, 0x{f2u(-LOG2E):08x}
    s_nop 4
    s_bitcmp1_b32 s{S_WAVE}, 1
    s_cbranch_scc1 L_k2_jobu
    s_lshl_b32 s{S_T2}, s{S_T2}, 2
    v_add_u32 v{V_S}, s{S_T2}, v{V_S}
    v_max3_f32 v{V_TMP+1}, |v{V_JC}|, |v{V_JC+1}|, |v{V_JC+2}|
    """)
    for i in range(3, 15, 2):
        a(f"v_max3_f32 v{V_TMP+1}, |v{V_JC+i}|, |v{V_JC+i+1}|, v{V_TMP+1}")
    a(f"""
    v_max_f32 v{V_TMP+1}, |v{V_JC+15}|, v{V_TMP+1}
    v_cmpx_nle_f32 vcc, v{V_TMP+1}, v{V_TMP+2}
    ds_write_b32 v{V_TMP+3}, v{V_ONE}
    s_mov_b64 exec, -1
    """)
    for i in range(16):
        a(f"v_mul_f32 v{V_JC+i}, s{S_T3}, v{V_JC+i}")
    a("""s_waitcnt lgkmcnt(0)
    s_barrier
    ;STAMPC 4""")
    a(f"ds_read_b32 v{V_TMP+3}, v{V_TMP+3}")
    for i in range(16):
        a(f"v_exp_f32 v{V_JX+i}, v{V_JC+i}")
    a(f"""
    s_waitcnt lgkmcnt(0)
    v_cmp_ne_u32 vcc, 0, v{V_TMP+3}
    s_cmp_lt_u32 s{S_WAVE}, 4
    s_nop 0
    """)
    for i in range(16):
        if i == 8:
            a(f"""s_cbranch_scc1 L_k2_job2
            s_mov_b32 exec_hi, 0
            L_k2_job2:""")
        if i == 10:
            a(f"""s_cbranch_scc0 L_k2_job3""")
        a(f"v_cndmask_b32 v{V_JC+i}, v{V_JX+i}, v{V_JC+i}, vcc")
        a(f"ds_write_b32 v{V_S}, v{V_JC+i} offset:{L_XA + ((i//4)*8 + i%4)*256}")
    a(f"""
    s_branch L_k2_job3
L_k2_jobu:
    s_mul_i32 s{S_T2}, s{S_T2}, {PL}
    v_add_u32 v{V_S}, s{S_T2}, v{V_S}
    """)
    for i in range(16):
        a(f"v_cvt_f64_f32 v[{V_JW+2*i}:{V_JW+2*i+1}], v{V_JC+i}")
    a(f"""
    s_cmp_lt_u32 s{S_WAVE}, 4
    s_barrier
    ds_read_b32 v{V_TMP+3}, v{V_TMP+3}
    """)
    for i in range(16):
        if i == 8:
            a(f"""s_cbranch_scc1 L_k2_job4
            s_mov_b32 exec_hi, 0
            L_k2_job4:""")
        if i == 10:
            a(f"""s_cbranch_scc0 L_k2_job3""")
        a(f"ds_write_b64 v{V_S}, v[{V_JW+2*i}:{V_JW+2*i+1}] offset:{L_AGG + ((i//4)*8 + i%4)*256}")
    a(f"""
L_k2_job3:
    s_mov_b64 exec, -1
    s_waitcnt lgkmcnt(0)
    v_readfirstlane_b32 s{S_SAFE}, v{V_TMP+3}
    s_branch L_k2_nojob
L_k2_nojob1:
    """)
    rest()
    a(f"""
L_k2_nojob:
    ;STAMPC 5
    """)
    tdfin()
    a(f"v_add_u32 v{V_RAC}, s{S_XS}, v{V_RA}")
    a(f"s_waitcnt vmcnt({vmw()})")
    a(";STAMPC 6")
    a(e_read())
    for k in range(4): a(a_read(k))
    a("s_waitcnt lgkmcnt(0)")
    a(mfmas(0))
    a(f"""
    s_cmp_eq_u32 s{S_F2}, 0
    s_cbranch_scc1 L_k2_nob4
    s_mov_b32 s{S_F2}, 0
    s_barrier
L_k2_nob4:
    """)
    a(ea_read(V_GAN))
    a(x_m0()); a(x_dma(PX + 4*(Cfg.XD-1)))
    a(e_dma(PE + Cfg.ED - 1))
    a("s_waitcnt lgkmcnt(0)")
    gen_loop(a)
    a(f"""
L_k2_after:
    ;STAMP 6
    s_waitcnt vmcnt(0) lgkmcnt(0)
    s_barrier
    s_add_u32 s{S_R0}, s{S_R0}, s{S_STEP}
    s_cmp_lg_u32 s{S_MORE}, 0
    s_cbranch_scc1 L_k2_init
L_k2_epi:
    ;STAMP 7
    ;STAMPOUT
    v_cmp_gt_u32 vcc, {NLOC*8}, v0
    s_and_saveexec_b64 s[{S_T1}:{S_T1+1}], vcc
    s_cbranch_execz L_k2_end
    v_lshrrev_b32 v{V_TMP+2}, 3, v0
    v_and_b32 v{V_TMP+3}, 7, v0
    v_bfe_u32 v{V_TMP}, v0, 2, 1
    v_mul_u32_u24 v{V_TMP}, {PL}, v{V_TMP}
    v_lshl_add_u32 v{V_TMP}, v{V_TMP+2}, 8, v{V_TMP}
    v_and_b32 v{V_TMP+1}, 3, v0
    v_lshl_add_u32 v{V_TMP}, v{V_TMP+1}, 6, v{V_TMP}
    ds_read_b128 v[120:123], v{V_TMP} offset:{L_AGG}
    ds_read_b128 v[124:127], v{V_TMP} offset:{L_AGG+16}
    ds_read_b128 v[128:131], v{V_TMP} offset:{L_AGG+32}
    ds_read_b128 v[132:135], v{V_TMP} offset:{L_AGG+48}
    v_lshlrev_b32 v{V_TMP+2}, 8, v{V_TMP+2}
    v_add_u32 v{V_TMP+2}, s2, v{V_TMP+2}
    v_lshlrev_b32 v{V_TMP+2}, 7, v{V_TMP+2}
    v_lshl_add_u32 v{V_TMP+2}, v{V_TMP+3}, 4, v{V_TMP+2}
    s_mov_b32 s{S_T3}, 0x{f2u(-LOG2E):08x}
    s_waitcnt lgkmcnt(0)
    """)
    for i in range(8):
        a(f"v_cvt_f32_f64 v{100+i}, v[{120+2*i}:{121+2*i}]")
    for i in range(8):
        a(f"v_mul_f32 v{108+i}, s{S_T3}, v{100+i}")
    for i in range(8):
        a(f"v_exp_f32 v{108+i}, v{108+i}")
    for i in range(8):
        a(f"v_add_f32 v{108+i}, 1.0, v{108+i}")
    for i in range(8):
        a(f"v_rcp_f32 v{108+i}, v{108+i}")
    for i in range(8):
        a(f"v_mul_f32 v{100+i}, v{100+i}, v{108+i}")
    for i in range(4):
        a(f"v_cvt_pk_bf16_f32 v{116+i}, v{100+2*i}, v{101+2*i}")
    a(f"""
    buffer_store_dwordx4 v[116:119], v{V_TMP+2}, s[{S_OUT}:{S_OUT+3}], 0 offen{Cfg.OFL}
L_k2_end:
    s_endpgm
    """)
    return a.text()

HDR = open("standalone__edge_featured_mpnn_egc__graph.s.ref").read().split("; Override launch")[0]

def build(path):
    s = HDR
    s += f"; @launch kernel=bin_kernel grid=({NP+3},1,1) block=({K1_BLOCK},1,1) lds={K1_LDS}\n"
    for _ in range(Cfg.EXTRAK):
        s += f"; @launch kernel=bin_kernel grid=({NP+3},1,1) block=({K1_BLOCK},1,1) lds={K1_LDS}\n"
    s += f"; @launch kernel=main_kernel grid=({NB},1,1) block=(512,1,1) lds={K2_LDS}\n"
    for _ in range(Cfg.EXTRAK2):
        s += f"; @launch kernel=main_kernel grid=({NB},1,1) block=(512,1,1) lds={K2_LDS}\n"
    if Cfg.AMP:
        s += "; @launch kernel=amp_kernel grid=(1,1,1) block=(64,1,1) lds=0\n"
    s += '.amdgcn_target "amdgcn-amd-amdhsa--gfx950"\n.text\n'
    s += """; Design (generated by my own script, gen/gen.py):
;  main_kernel: WG b owns nodes {b + 256 k}; it gathers its segments, counting-sorts them by node in LDS
"""
    s += gen_k1() + gen_k2()
    if Cfg.AMP:
        s += f"""
    .globl amp_kernel
    .p2align 8
    .type amp_kernel,@function
amp_kernel:
    s_cmp_lg_u32 s2, 0
    s_cbranch_scc1 L_amp_end
    s_load_dwordx2 s[4:5], s[0:1], 72
    s_waitcnt lgkmcnt(0)
    s_add_u32 s4, s4, {WS_STAMP}
    s_addc_u32 s5, s5, 0
    s_load_dword s6, s[4:5], {Cfg.AMP[0]}
    s_load_dword s7, s[4:5], {Cfg.AMP[1]}
    s_memrealtime s[8:9]
    s_waitcnt lgkmcnt(0)
    s_sub_u32 s6, s7, s6
    s_lshr_b32 s6, s6, {Cfg.AMP[2] if len(Cfg.AMP) > 2 else 0}
    s_and_b32 s6, s6, 0xffff
    s_mul_i32 s6, s6, 5
L_amp:
    s_memrealtime s[10:11]
    s_waitcnt lgkmcnt(0)
    s_sub_u32 s12, s10, s8
    s_cmp_lt_u32 s12, s6
    s_cbranch_scc1 L_amp
L_amp_end:
    s_endpgm
"""
    s += '.section .rodata,"a"\n' + kd("bin_kernel", 80 if Cfg.STAMP else 48, 64 if Cfg.STAMP else 40) + kd("main_kernel", 256, 102) + (kd("amp_kernel", 8, 16) if Cfg.AMP else "")
    out = []
    for line in s.split("\n"):
        t = line.strip()
        if t.startswith(";K1S "):
            if Cfg.STAMP and Cfg.RT:
                n = int(t.split()[1]); out.append(f"    s_memrealtime s[{48+2*n}:{49+2*n}]")
        elif t == ";K1OUT":
            if Cfg.STAMP and Cfg.RT:
                out.append("    s_waitcnt vmcnt(0)")
                out.append("    s_memrealtime s[54:55]")
                out.append("    s_waitcnt lgkmcnt(0)")
                for k in range(8): out.append(f"    v_mov_b32 v{56+k}, s{48+k}")
                out.append("    s_lshr_b32 s56, s28, 6")
                out.append("    s_lshl_b32 s57, s2, 4")
                out.append("    s_add_u32 s56, s56, s57")
                out.append("    s_lshl_b32 s56, s56, 5")
                out.append(f"    s_add_u32 s56, s56, {WS_STAMP + 0x40000}")
                out.append("    v_mov_b32 v64, 0")
                out.append("    s_mov_b64 exec, 1")
                for k in range(2): out.append(f"    buffer_store_dwordx4 v[{56+4*k}:{59+4*k}], v64, s[20:23], s56 offen offset:{16*k}")
                out.append("    s_mov_b64 exec, -1")
        elif t.startswith(";STAMPC "):
            if Cfg.STAMP and Cfg.SC:
                n = int(t.split()[1]); out.append(f"    s_memtime s[{60+2*n}:{61+2*n}]")
        elif t.startswith(";STAMPB "):
            if Cfg.STAMP and Cfg.SB:
                n = int(t.split()[1]); out.append(f"    s_memtime s[{60+2*n}:{61+2*n}]")
        elif t.startswith(";STAMP "):
            if Cfg.STAMP and not Cfg.SB and not Cfg.SC:
                n = int(t.split()[1])
                if Cfg.RT:
                    if n in (0, 5, 7):
                        out.append(f"    s_memtime s[{60+2*n}:{61+2*n}]")
                        m = {0: 1, 5: 2, 7: 3}[n]
                        out.append(f"    s_memrealtime s[{60+2*m}:{61+2*m}]")
                else:
                    out.append(f"    s_memtime s[{60+2*n}:{61+2*n}]")
        elif t == ";STAMPOUT":
            if Cfg.STAMP:
                out.append("    s_waitcnt lgkmcnt(0)")
                for k in range(16): out.append(f"    v_mov_b32 v{100+k}, s{60+k}")
                out.append(f"    s_lshl_b32 s{S_T1}, s2, 3")
                out.append(f"    s_add_u32 s{S_T1}, s{S_T1}, s{S_WAVE}")
                out.append(f"    s_lshl_b32 s{S_T1}, s{S_T1}, 6")
                out.append(f"    s_add_u32 s{S_T1}, s{S_T1}, {WS_STAMP}")
                out.append(f"    v_mov_b32 v116, 0")
                out.append(f"    s_mov_b64 exec, 1")
                for k in range(4): out.append(f"    buffer_store_dwordx4 v[{100+4*k}:{103+4*k}], v116, s[{S_WS}:{S_WS+3}], s{S_T1} offen offset:{16*k}")
                out.append(f"    s_mov_b64 exec, -1")
                out.append("    s_nop 4")
                if Cfg.TL:
                    out += [f"    s_lshl_b32 s{S_T1}, s2, 3", f"    s_add_u32 s{S_T1}, s{S_T1}, s{S_WAVE}", f"    s_lshl_b32 s{S_T1}, s{S_T1}, 8",
                            f"    s_add_u32 s{S_T1}, s{S_T1}, {WS_STAMP + 0x80000}",
                            f"    buffer_store_dword v243, v{V_L4}, s[{S_WS}:{S_WS+3}], s{S_T1} offen"]
                if Cfg.DBG:
                    out += ["    s_load_dwordx2 s[84:85], s[0:1], 64", "    s_waitcnt lgkmcnt(0)",
                            f"    s_sub_u32 s84, s84, {512*(Cfg.DBG-1)}", "    s_subb_u32 s85, s85, 0",
                            "    s_and_b32 s85, s85, 0xffff", "    s_mov_b32 s86, 64", "    s_mov_b32 s87, 0x00020000",
                            "    s_sub_u32 s80, s64, s62", "    s_sub_u32 s81, s66, s64", "    s_sub_u32 s82, s70, s60", "    s_sub_u32 s83, s74, s70",
                            "    v_mov_b32 v100, s80", "    v_mov_b32 v101, s81", "    v_mov_b32 v102, s82", "    v_mov_b32 v103, s83",
                            f"    s_lshl_b32 s80, s2, 4", f"    s_lshl_b32 s81, s{S_WAVE}, 8", "    s_add_u32 s80, s80, s81",
                            "    s_mov_b64 exec, 1", "    buffer_store_dwordx4 v[100:103], v116, s[84:87], s80 offen", "    s_mov_b64 exec, -1", "    s_nop 4"]
        else: out.append(line)
    open(path, "w").write("\n".join(out))

if __name__ == "__main__":
    out = "standalone__edge_featured_mpnn_egc__graph.s"
    for arg in sys.argv[1:]:
        if "=" in arg:
            k, v = arg.split("=")
            if k == "out": out = v
            else: setattr(Cfg, k, eval(v))
    build(out)
    print("wrote", out, "K2_LDS", K2_LDS)
```
